```python
import torch

def _softmax(x, axis=-1):
    return torch.softmax(x, dim=axis)
def _gelu(x):
    return torch.nn.functional.gelu(x, approximate="tanh")
def _silu(x):
    return torch.nn.functional.silu(x)
def _sigmoid(x):
    return torch.sigmoid(x)
def _layernorm(x, axis=-1, eps=1e-5):
    m = x.mean(dim=axis, keepdim=True)
    v = x.var(dim=axis, keepdim=True, unbiased=False)
    return (x - m) / torch.sqrt(v + eps)
def _scatter_add(tgt, idx, src, axis=0):
    return tgt.clone().index_add_(axis, idx, src)
def _segment_sum(src, seg, n):
    out = torch.zeros((n,) + src.shape[1:], dtype=src.dtype)
    return out.index_add_(0, seg, src)
def _pad(x, pw):
    flat = tuple(v for pair in reversed(pw) for v in pair)
    return torch.nn.functional.pad(x, flat)

kernel_name = 'sequential_preLN__sliding_local_dilated__glu_gated_glu__prompt'

def setup_inputs():

    _w = (lambda a: (lambda t: t.to(torch.bfloat16) if t.is_floating_point() else t)(torch.as_tensor(a)))
    def _A_setup():
        B, S, D = 1, 2048, 1024
        return {
            "x": _w((lambda *s: torch.randn(*s, dtype=torch.bfloat16) * 0.05)(B, S, D)),
            "wqkv": _w((lambda *s: torch.randn(*s, dtype=torch.bfloat16) * 0.05)(D, 3 * D)),
            "wo": _w((lambda *s: torch.randn(*s, dtype=torch.bfloat16) * 0.05)(D, D)),
        }
    _A_in = _A_setup()

    def _B_setup():
        B, S, D, F = 1, 2048, 1024, 3584
        return {
            "x": _w((lambda *s: torch.randn(*s, dtype=torch.bfloat16) * 0.05)(B, S, D)),
            "w_gate": _w((lambda *s: torch.randn(*s, dtype=torch.bfloat16) * 0.05)(D, F)),
            "w_up": _w((lambda *s: torch.randn(*s, dtype=torch.bfloat16) * 0.05)(D, F)),
            "w_down": _w((lambda *s: torch.randn(*s, dtype=torch.bfloat16) * 0.05)(F, D)),
        }
    _B_in = _B_setup()

    return {
        "A_x": _A_in["x"],
        "A_wqkv": _A_in["wqkv"],
        "A_wo": _A_in["wo"],
        "B_x": _B_in["x"],
        "B_w_gate": _B_in["w_gate"],
        "B_w_up": _B_in["w_up"],
        "B_w_down": _B_in["w_down"],
    }

def reference(A_x, A_wqkv, A_wo, B_x, B_w_gate, B_w_up, B_w_down):
    def _A_ref(x, wqkv, wo):
        B, S, D = x.shape
        H = 32; Dh = D // H
        W, dil = 8, 2
        qkv = (lambda x, *d: x.permute(*d))((x @ wqkv).reshape(B, S, 3, H, Dh), 2, 0, 3, 1, 4)
        q, k, v = qkv[0], qkv[1], qkv[2]
        scale = Dh ** -0.5
        pos = torch.arange(S)
        off = torch.arange(W) * dil
        idx = pos[:, None] - off[None, :]
        mask = idx >= 0
        idx_c = torch.where(mask, idx, 0).reshape(-1)
        kg = k[:, :, idx_c, :].reshape(B, H, S, W, Dh)
        vg = v[:, :, idx_c, :].reshape(B, H, S, W, Dh)
        logits = torch.einsum("bhsd,bhswd->bhsw", q, kg) * scale
        logits = torch.where(mask[None, None, :, :], logits, -1e9)
        attn = _softmax(logits, axis=-1)
        o = torch.einsum("bhsw,bhswd->bhsd", attn, vg)
        return (lambda x, *d: x.permute(*d))(o, 0, 2, 1, 3).reshape(B, S, D) @ wo

    def _B_ref(x, w_gate, w_up, w_down):
        g = torch.einsum("bsd,df->bsf", x, w_gate)
        u = torch.einsum("bsd,df->bsf", x, w_up)
        h = _sigmoid(g) * u
        return torch.einsum("bsf,fd->bsd", h, w_down)

    x = A_x
    h = x + _A_ref(_layernorm(x, axis=-1), A_wqkv, A_wo)
    h2 = h + _B_ref(_layernorm(h, axis=-1), B_w_gate, B_w_up, B_w_down)
    return h2
```

```python
class Stream:
    def __init__(self):
        self.items = []
    def i(self, text):
        for t in text.strip().split('\n'):
            t = t.strip()
            if t:
                self.items.append(('i', t))
    def vm(self, tag, text): self.items.append(('vm', tag, text))
    def lg(self, tag, text): self.items.append(('lg', tag, text))
    def wvm(self, tag): self.items.append(('wvm', tag))
    def wlg(self, tag): self.items.append(('wlg', tag))
    def label(self, n): self.items.append(('label', n))
    def extend(self, o): self.items.extend(o.items)

def resolve_loop(body_fn, niter_virtual=6):
    vm, lg = [], []
    out = None
    for it in range(niter_virtual):
        st = body_fn(it)
        lines = []
        for x in st.items:
            if x[0] == 'i': lines.append(x[1])
            elif x[0] == 'label': lines.append(x[1] + ':')
            elif x[0] == 'vm': vm.append(x[1]); lines.append(x[2])
            elif x[0] == 'lg': lg.append(x[1]); lines.append(x[2])
            elif x[0] in ('wvm', 'wlg'):
                q = vm if x[0] == 'wvm' else lg
                tags = x[1] if isinstance(x[1], list) else [x[1]]
                idx = [max(i for i, t in enumerate(q) if t == tg) if tg in q else None for tg in tags]
                if None in idx:
                    n = None
                else:
                    n = len(q) - 1 - max(idx)
                lines.append(('W', x[0], n))
        out = lines
    res = []
    for l in out:
        if isinstance(l, tuple):
            assert l[2] is not None
            if l[1] == 'wvm':
                res.append('s_waitcnt vmcnt(%d)' % min(l[2], 63))
            else:
                res.append('s_waitcnt lgkmcnt(%d)' % min(l[2], 15))
        else:
            res.append(l)
    return res

def verify(pro, body_fn, body_lines, niter):
    import re
    q = {'vm': [], 'lg': []}
    done = {'vm': 0, 'lg': 0}
    def apply_text(t):
        if t.startswith('s_waitcnt'):
            m = re.search(r'vmcnt\((\d+)\)', t)
            if m: done['vm'] = max(done['vm'], len(q['vm']) - int(m.group(1)))
            m = re.search(r'lgkmcnt\((\d+)\)', t)
            if m: done['lg'] = max(done['lg'], len(q['lg']) - int(m.group(1)))
    for x in pro.items:
        if x[0] == 'i': apply_text(x[1])
        elif x[0] in ('vm', 'lg'): q[x[0]].append(x[1])
        elif x[0] in ('wvm', 'wlg'): raise Exception('no symbolic waits in prologue')
    maxout = 0
    for it in range(niter):
        st = body_fn(it)
        assert len(st.items) == len(body_lines)
        for x, ln in zip(st.items, body_lines):
            if x[0] == 'i': apply_text(x[1])
            elif x[0] in ('vm', 'lg'):
                q[x[0]].append(x[1])
                if x[0] == 'vm': maxout = max(maxout, len(q['vm']) - done['vm'])
            elif x[0] in ('wvm', 'wlg'):
                apply_text(ln)
                k = x[0][1:]
                tags = x[1] if isinstance(x[1], list) else [x[1]]
                for tg in tags:
                    assert tg in q[k], ('missing op', tg, it)
                    idx = max(i for i, t in enumerate(q[k]) if t == tg)
                    assert idx < done[k], ('wait not satisfied', it, tg, idx, done[k], ln)
    return maxout

def lines_of(st):
    out = []
    for x in st.items:
        if x[0] == 'i': out.append(x[1])
        elif x[0] == 'label': out.append(x[1] + ':')
        elif x[0] in ('vm', 'lg'): out.append(x[2])
        else: raise Exception('symbolic wait in plain stream')
    return out

def kernel_text(name, lines, nvgpr, accum_offset, nsgpr=96):
    t = ['.text', '.globl %s' % name, '.p2align 8', '.type %s,@function' % name, name + ':']
    for l in lines:
        t.append(l if l.endswith(':') else '    ' + l)
    t += ['.section .rodata,"a"', '.p2align 6', '.amdhsa_kernel %s' % name,
          '  .amdhsa_next_free_vgpr %d' % nvgpr, '  .amdhsa_next_free_sgpr %d' % nsgpr,
          '  .amdhsa_accum_offset %d' % accum_offset, '  .amdhsa_group_segment_fixed_size 0',
          '  .amdhsa_kernarg_size 80', '  .amdhsa_user_sgpr_count 2',
          '  .amdhsa_user_sgpr_kernarg_segment_ptr 1', '  .amdhsa_system_sgpr_workgroup_id_x 1',
          '  .amdhsa_float_denorm_mode_32 3',
          '.end_amdhsa_kernel']
    return '\n'.join(t) + '\n'

HEADER = """; Kernarg layout for this problem (80 bytes, ptrs only, base s[0:1]):
"""

def file_text(launches, kernels):
    t = HEADER
    for (k, g, b, lds) in launches:
        t += '; @launch kernel=%s grid=(%d,1,1) block=(%d,1,1) lds=%d\n' % (k, g, b, lds)
    t += '.amdgcn_target "amdgcn-amd-amdhsa--gfx950"\n'
    for k in kernels:
        t += k
    return t
```

```python
from asmlib import *
from k3 import WS_XN, WS_O, WS_H, WS_HN, WS_HH, WS_STAMP, stamp_code, stamp_store

def gen_k1(name='k1_kernel', NS=4, DT=2, stamps=False, kidx=1):
    SLOT = 24576
    HALO = NS * SLOT
    LDS = HALO + 32768 + 12288
    NST = 16
    A0 = 32
    acc = lambda sec, p, tb: A0 + ((sec * 4 + p) * 2 + tb) * 4
    R4 = lambda r: f'v[{r}:{r+3}]'
    HK, HV = 128, 132
    WF0, TF0 = 136, 168
    HF0 = TF0 + DT * 16
    NV = HF0 + 8
    WF = lambda n, lo=0, hi=3: f'v[{WF0+4*n+lo}:{WF0+4*n+hi}]'
    TF = lambda s, ks, tb: R4(TF0 + (((s % DT) * 2 + ks) * 2 + tb) * 4)
    HF = lambda ks: R4(HF0 + 4 * ks)
    P = Stream()
    P.i(f"""
    s_cmp_ge_u32 s2, 256
    s_cbranch_scc1 {name}_done
    s_load_dwordx2 s[4:5], s[0:1], 8
    s_load_dwordx2 s[8:9], s[0:1], 72
    """)
    if stamps: P.i('s_memrealtime s[78:79]')
    P.i(stamp_code(0, stamps))
    P.i(f"""
    v_lshrrev_b32 v1, 6, v0
    v_and_b32 v0, 63, v0
    v_readfirstlane_b32 s10, v1
    s_and_b32 s11, s2, 7
    s_lshr_b32 s28, s2, 3
    s_and_b32 s29, s11, 1
    s_lshl_b32 s29, s29, 3
    s_and_b32 s30, s28, 7
    s_add_u32 s29, s29, s30          ; mt (0..15)
    s_lshr_b32 s30, s11, 1
    s_lshl_b32 s30, s30, 2
    s_lshr_b32 s31, s28, 3
    s_add_u32 s30, s30, s31          ; nt (0..15)
    v_lshlrev_b32 v10, 4, v0         ; lane*16
    v_lshrrev_b32 v11, 5, v0
    v_lshlrev_b32 v11, 3, v11
    v_bfe_u32 v12, v0, 3, 2
    v_add_u32 v11, v11, v12
    s_lshl_b32 s32, s10, 4
    v_add_u32 v11, s32, v11
    v_mul_u32_u24 v11, 6144, v11
    v_bfe_u32 v12, v0, 4, 2
    v_lshlrev_b32 v12, 1, v12
    v_and_b32 v14, 7, v0
    v_xor_b32 v12, v12, v14
    v_lshl_add_u32 v2, v12, 4, v11
    v_add_u32 v3, {4*6144-1024}, v2
    s_mul_i32 s38, s10, 6144
    s_lshl_b32 s36, s29, 3
    s_lshl_b32 s37, s10, 1
    s_add_u32 s36, s36, s37
    s_lshl_b32 s37, s36, 15
    s_lshl_b32 s35, s30, 7
    s_lshl_b32 s33, s29, 18          ; mt*8*32768
    s_sub_u32 s34, s33, 0x8000
    s_cmp_eq_u32 s29, 0
    s_cselect_b32 s34, 0, s34
    s_cselect_b32 s26, 0, 0x8000
    s_lshl_b32 s47, s10, 10          ; w*1024
    s_waitcnt lgkmcnt(0)
    s_add_u32 s12, s4, s35
    s_addc_u32 s13, s5, 0
    s_sub_u32 s14, {1024*6144}, s35
    s_mov_b32 s15, 0x20000
    s_add_u32 s16, s8, s37
    s_addc_u32 s17, s9, 0
    s_mov_b32 s18, 0x8000
    s_mov_b32 s19, 0x20000
    s_add_u32 s20, s16, 0x8000
    s_addc_u32 s21, s17, 0
    s_mov_b32 s22, 0x8000
    s_mov_b32 s23, 0x20000
    s_add_u32 s24, s8, s34
    s_addc_u32 s25, s9, 0
    s_mov_b32 s27, 0x20000
    """)
    assert WS_XN == 0
    def dma(st, stage, n):
        st.vm(('W', stage, n), f'buffer_load_dwordx4 v{2+(n&1)}, s[12:15], {"s40" if n < 4 else "s45"} offen offset:{(n%4)*1024} lds')
    def hdma(st, m):
        st.vm(('H', 2 * m), 'buffer_load_dwordx4 v10, s[24:27], s46 offen lds')
    def tload(st, stage, ks, tb, imm):
        b = 16 + 4 * tb
        st.vm(('T', stage, ks, tb), f'buffer_load_dwordx4 {TF(stage, ks, tb)}, v10, s[{b}:{b+3}], s42 offen offset:{imm}')
    def wread(st, stage, ks, n, q):
        st.lg(('R', stage, ks, n, q), f'ds_read_b64_tr_b16 {WF((ks*12+n)%8, 2*q, 2*q+1)}, v{16+(n&3)} offset:{ks*12288+(n>>2)*2048+q*1024}')
    def hread(st, stage, ks, imm):
        st.lg(('HR', stage, ks), f'ds_read_b128 {HF(ks)}, v24 offset:{imm}')
    PRO_SLOT = len(P.items)
    P.i(f"""
    v_lshrrev_b32 v11, 5, v0
    v_mul_u32_u24 v11, 6144, v11
    v_bfe_u32 v12, v0, 2, 3
    v_lshl_add_u32 v11, v12, 7, v11
    v_and_b32 v12, 3, v0
    v_lshl_add_u32 v11, v12, 3, v11
    v_bfe_u32 v12, v0, 3, 2
    v_xor_b32 v12, s10, v12
    v_add_u32 v24, {HALO}, v10
    """)
    for j in range(4):
        P.i(f'v_xor_b32 v14, {j}, v12\nv_lshl_add_u32 v{20+j}, v14, 5, v11\nv_mov_b32 v{16+j}, v{20+j}')
    for r in range(104): P.i(f'v_mov_b32 v{A0+r}, 0')
    P.i('PROWAIT\ns_barrier')
    P.i(stamp_code(1, stamps))
    LAG = 6
    for n in range(2):
        for q in range(2): wread(P, 0, 0, n, q)
    hread(P, 0, 0, 0)
    for n in range(2, LAG):
        for q in range(2): wread(P, 0, 0, n, q)

    def body(it):
        B = Stream()
        B.label(f'{name}_loop')
        for sl in range(DT):
            s = it * DT + sl
            for ks in range(2):
                fill = [[] for _ in range(24)]
                for n in range(12):
                    m = ks * 12 + n + LAG
                    rs, rks, rn = s + m // 24, (m % 24) // 12, m % 12
                    for q in range(2):
                        fill[2*n+q].append(lambda rs=rs, rks=rks, rn=rn, q=q: wread(B, rs, rks, rn, q))
                ns, nks = (s, 1) if ks == 0 else (s + 1, 0)
                fill[15].append(lambda: hread(B, ns, nks, (sl * 2 + ks + 1) * 1024))
                ts, tks = (s + DT - 1, 1) if ks == 0 else (s + DT, 0)
                fill[1].append(lambda: tload(B, ts, tks, 0, ks * 1024))
                fill[9].append(lambda: tload(B, ts, tks, 1, ks * 1024))
                if ks == 0:
                    ds = s + NS - 2
                    fill[5].append(lambda: dma(B, ds, 2))
                    fill[13].append(lambda: dma(B, ds, 3))
                    fill[17].append(lambda: B.i('s_add_u32 m0, m0, 4096'))
                    fill[19].append(lambda: dma(B, ds, 4))
                    fill[23].append(lambda: B.i(f"""
                      s_add_u32 s43, s43, {SLOT}
                      s_cmp_eq_u32 s43, {NS*SLOT}
                      s_cselect_b32 s43, 0, s43"""))
                else:
                    fill[3].append(lambda: dma(B, s + NS - 2, 5))
                    if (s + NS - 2) % 2 == 0:
                        fill[5].append(lambda: B.i(f's_add_u32 m0, s46, {HALO}'))
                        fill[6].append(lambda: hdma(B, (s + NS - 2) // 2))
                        fill[7].append(lambda: B.i('s_add_u32 s46, s46, 4096'))
                    fill[8].append(lambda: B.i(f"""
                      s_add_u32 s41, s41, {SLOT}
                      s_cmp_eq_u32 s41, {NS*SLOT}
                      s_cselect_b32 s41, 0, s41"""))
                    fill[10].append(lambda: B.i(f's_add_u32 s40, s40, {64*6144}\ns_add_u32 s45, s45, {64*6144}'))
                    fill[11].append(lambda: B.i('s_add_u32 m0, s41, s38'))
                    fill[13].append(lambda: dma(B, s + NS - 1, 0))
                    fill[21].append(lambda: dma(B, s + NS - 1, 1))
                    fill[23].append(lambda: B.i('s_add_u32 s42, s42, 2048'))
                B.wvm([('T', s, ks, tb) for tb in range(2)])
                for n in range(12):
                    sec, p = n >> 2, n & 3
                    if ks == 1 and n == 6:
                        B.wvm([('W', s + 1, i) for i in range(6)] + ([('H', s + 1)] if (s + 1) % 2 == 0 else []))
                        B.i('s_barrier')
                        for jj in range(4): B.i(f'v_add_u32 v{16+jj}, s43, v{20+jj}')
                    B.wlg([('R', s, ks, n, 1)] + ([('HR', s, ks)] if n == 4 else []))
                    w = WF((ks * 12 + n) % 8)
                    for tb in range(2):
                        a = R4(acc(sec, p, tb))
                        if sec < 2: B.i(f'v_mfma_f32_16x16x32_bf16 {a}, {w}, {TF(s, ks, tb)}, {a}')
                        else: B.i(f'v_mfma_f32_16x16x32_bf16 {a}, {TF(s, ks, tb)}, {w}, {a}')
                        for f in fill[2*n+tb]: f()
                    if n == 4: B.i(f'v_mfma_f32_16x16x32_bf16 {R4(HK)}, {w}, {HF(ks)}, {R4(HK)}')
                    if n == 8: B.i(f'v_mfma_f32_16x16x32_bf16 {R4(HV)}, {HF(ks)}, {w}, {R4(HV)}')
        B.i(f'v_add_u32 v24, {2048*DT}, v24')
        B.i(f's_add_u32 s44, s44, 1\ns_cmp_lt_u32 s44, {NST//DT}\ns_cbranch_scc1 {name}_loop')
        return B
    L = Stream()
    nh = 0
    for it in range(-3, 0):
        for x in body(it).items:
            if x[0] == 'vm' and x[1][1] >= 0:
                tg = x[1]
                if tg[0] == 'W':
                    L.i(f's_add_u32 m0, s38, {tg[1]*SLOT + (4096 if tg[2] >= 4 else 0)}\ns_mov_b32 s40, {tg[1]*64*6144}\ns_mov_b32 s45, {tg[1]*64*6144+4096}')
                    dma(L, tg[1], tg[2])
                elif tg[0] == 'H':
                    L.i(f's_add_u32 s46, s47, {tg[1]*2048}\ns_add_u32 m0, s46, {HALO}\ns_nop 0')
                    hdma(L, tg[1] // 2); nh += 1
                else:
                    L.i(f's_mov_b32 s42, {tg[1]*2048}')
                    tload(L, tg[1], tg[2], tg[3], tg[2] * 1024)
    L.i(f's_add_u32 s46, s47, {nh*4096}')
    L.i(f's_mov_b32 s42, {(DT-1)*2048+1024}\ns_mov_b32 s41, {(NS-2)*SLOT}\ns_mov_b32 s43, 0\ns_mov_b32 s44, 0')
    vms = [x[1] for x in L.items if x[0] == 'vm']
    assert vms[-1][0] == 'W'
    nafter = len(vms) - 1 - max(vms.index(('W', 0, 5)), vms.index(('H', 0)))
    P.items[PRO_SLOT:PRO_SLOT] = L.items
    P.items = [('i', f's_waitcnt vmcnt({nafter})') if x == ('i', 'PROWAIT') else x for x in P.items]
    bl = resolve_loop(body)
    mo = verify(P, body, bl, NST // DT)

    E = Stream()
    E.i(stamp_code(2, stamps))
    QF = lambda hd, tb: 136 + (hd * 2 + tb) * 4
    KF = lambda hd, kb: 152 + (hd * 3 + kb) * 4
    VF = lambda p: 176 + p * 6
    ONES = 4
    M0r, BA, BB = 26, 30, 31
    E.i(f"""
    v_and_b32 v11, 15, v0            ; t
    v_lshrrev_b32 v12, 4, v0         ; g
    v_and_b32 v13, 1, v0             ; par
    v_cmp_eq_u32 s[50:51], 1, v13
    v_and_b32 v14, 14, v11
    v_lshlrev_b32 v15, 2, v12
    v_sub_u32 v14, v14, v15          ; d_a = t - par - 4g
    v_cmp_le_i32 s[52:53], 0, v14
    v_cmp_le_i32 s[54:55], 2, v14
    v_mov_b32 v15, 0xffff
    v_mov_b32 v14, 0xffff0000
    v_cndmask_b32 v15, v15, v14, s[50:51]
    v_cndmask_b32 v{M0r}, v15, 0, s[52:53]
    v_cndmask_b32 v{M0r+1}, v15, 0, s[54:55]
    v_cndmask_b32 v{M0r+2}, 0, v15, s[52:53]
    v_cndmask_b32 v{M0r+3}, 0, v15, s[54:55]
    s_cmp_eq_u32 s36, 0
    s_cselect_b32 s56, 0xf149f2ca, 0
    v_mov_b32 v14, s56
    v_cndmask_b32 v{BA}, v14, 0, s[52:53]
    v_cndmask_b32 v{BB}, v14, 0, s[54:55]
    v_mov_b32 v4, 0x3f803f80
    v_mov_b32 v5, 0x3f803f80
    v_mov_b32 v6, 0x3f803f80
    v_mov_b32 v7, 0x3f803f80
    v_lshlrev_b32 v13, 3, v0
    s_lshl_b32 s57, s10, 9
    v_add_u32 v20, s57, v13
    s_lshl_b32 s57, s10, 12
    v_add_u32 v13, s57, v13
    """)
    for p in range(4):
        E.i(f's_xor_b32 s{84+p}, s10, {p}\ns_lshl_b32 s{84+p}, s{84+p}, 9\nv_add_u32 v{16+p}, s{84+p}, v13')
    E.i(f"""
    v_and_b32 v14, 1, v12
    v_add_u32 v14, s36, v14
    v_lshlrev_b32 v21, 15, v14
    v_lshrrev_b32 v14, 1, v12
    v_lshl_add_u32 v21, v14, 8, v21
    v_lshl_add_u32 v21, v11, 4, v21
    s_lshl_b32 s57, s30, 11
    v_add_u32 v21, s57, v21
    s_add_u32 s88, s8, 0x{WS_O:x}
    s_addc_u32 s89, s9, 0
    s_mov_b32 s90, 0x400000
    s_mov_b32 s91, 0x20000
    s_mov_b32 s48, 0x3e8293ee
    s_waitcnt vmcnt(0) lgkmcnt(0)
    s_barrier
    """)
    pk = lambda d, a: f'v_cvt_pk_bf16_f32 v{d}, v{a}, v{a+1}\nv_cvt_pk_bf16_f32 v{d+1}, v{a+2}, v{a+3}'
    for p in range(4):
        E.i(pk(KF(p >> 1, 2) + 2 * (p & 1), acc(1, p, 1)))
        E.i(pk(VF(p) + 4, acc(2, p, 1)))
    E.i(pk(HK, HK)); E.i(pk(HV, HV))
    for p in range(4):
        r = KF(p >> 1, 2) + 2 * (p & 1)
        E.i(f'ds_write_b64 v{16+p}, v[{r}:{r+1}] offset:4096')
        E.i(f'ds_write_b64 v{16+p}, v[{VF(p)+4}:{VF(p)+5}] offset:{4096+2048}')
    E.i(f'ds_write_b64 v20, v[{HK}:{HK+1}]\nds_write_b64 v20, v[{HV}:{HV+1}] offset:2048')
    for p in range(4):
        E.i(pk(KF(p >> 1, 1) + 2 * (p & 1), acc(1, p, 0)))
        E.i(pk(VF(p) + 2, acc(2, p, 0)))
        for tb in range(2): E.i(pk(QF(p >> 1, tb) + 2 * (p & 1), acc(0, p, tb)))
    E.i('s_waitcnt lgkmcnt(0)\ns_barrier')
    for p in range(4):
        r = KF(p >> 1, 0) + 2 * (p & 1)
        E.i(f'ds_read_b64 v[{r}:{r+1}], v{16+p}')
        E.i(f'ds_read_b64 v[{VF(p)}:{VF(p)+1}], v{16+p} offset:2048')
    OUT = lambda p, tb: 64 + (p * 2 + tb) * 4
    LS = lambda hd, tb: 96 + (hd * 2 + tb) * 4
    for tb in (1, 0):
        if tb == 0: E.i('s_waitcnt lgkmcnt(0)')
        for hd in range(2):
            b = 32 + 16 * hd
            E.i(f'v_mfma_f32_16x16x32_bf16 {R4(b)}, {R4(KF(hd, tb))}, {R4(QF(hd, tb))}, 0')
            E.i(f'v_mfma_f32_16x16x32_bf16 {R4(b+4)}, {R4(KF(hd, tb+1))}, {R4(QF(hd, tb))}, 0')
        E.i('s_nop 7')
        for hd in range(2):
            b = 32 + 16 * hd
            E.i(f"""
            v_cndmask_b32 v{b}, v{b}, v{b+1}, s[50:51]
            v_cndmask_b32 v{b+2}, v{b+2}, v{b+3}, s[50:51]
            v_cndmask_b32 v{b+4}, v{b+4}, v{b+5}, s[50:51]
            v_cndmask_b32 v{b+6}, v{b+6}, v{b+7}, s[50:51]
            v_cndmask_b32 v{b}, v{b}, v{b+4}, s[52:53]
            v_cndmask_b32 v{b+2}, v{b+2}, v{b+6}, s[54:55]
            """)
            if tb == 0: E.i(f'v_add_f32 v{b}, v{b}, v{BA}\nv_add_f32 v{b+2}, v{b+2}, v{BB}')
            E.i(f'v_max_f32 v{b+12}, v{b}, v{b+2}\nv_mov_b32 v{b+13}, v{b+12}')
        E.i('s_nop 0')
        for hd in range(2):
            b = 32 + 16 * hd
            E.i(f'v_permlane16_swap_b32 v{b+12}, v{b+13}')
        for hd in range(2):
            b = 32 + 16 * hd
            E.i(f'v_max_f32 v{b+12}, v{b+12}, v{b+13}\nv_mov_b32 v{b+13}, v{b+12}')
        E.i('s_nop 0')
        for hd in range(2):
            b = 32 + 16 * hd
            E.i(f'v_permlane32_swap_b32 v{b+12}, v{b+13}')
        for hd in range(2):
            b = 32 + 16 * hd
            E.i(f"""
            v_max_f32 v{b+12}, v{b+12}, v{b+13}
            v_sub_f32 v{b}, v{b}, v{b+12}
            v_sub_f32 v{b+2}, v{b+2}, v{b+12}
            v_mul_f32 v{b}, s48, v{b}
            v_mul_f32 v{b+2}, s48, v{b+2}
            v_exp_f32 v{b}, v{b}
            v_exp_f32 v{b+2}, v{b+2}
            """)
        for hd in range(2):
            b = 32 + 16 * hd
            E.i(f"""
            v_cvt_pk_bf16_f32 v{b}, v{b}, v{b}
            v_cvt_pk_bf16_f32 v{b+2}, v{b+2}, v{b+2}
            v_and_b32 v{b+8}, v{b}, v{M0r}
            v_and_b32 v{b+9}, v{b+2}, v{M0r+1}
            v_and_b32 v{b+10}, v{b}, v{M0r+2}
            v_and_b32 v{b+11}, v{b+2}, v{M0r+3}
            """)
        E.i('s_nop 1')
        for hd in range(2):
            b = 32 + 16 * hd
            E.i(f'v_mfma_f32_16x16x32_bf16 {R4(LS(hd, tb))}, {R4(ONES)}, {R4(b+8)}, 0')
            for hf in range(2):
                p = hd * 2 + hf
                E.i(f'v_mfma_f32_16x16x32_bf16 {R4(OUT(p, tb))}, {R4(VF(p)+2*tb)}, {R4(b+8)}, 0')
    E.i('s_nop 7')
    for hd in range(2):
        for tb in range(2): E.i(f'v_rcp_f32 v{LS(hd, tb)}, v{LS(hd, tb)}')
    E.i('s_nop 0')
    for p in range(4):
        for tb in range(2):
            for r in range(4): E.i(f'v_mul_f32 v{OUT(p, tb)+r}, v{OUT(p, tb)+r}, v{LS(p >> 1, tb)}')
        o = OUT(p, 0)
        d = 112 + 4 * p
        E.i(pk(d, o)); E.i(pk(d + 2, o + 4))
        E.i(f's_nop 1\nv_permlane16_swap_b32 v{d}, v{d+2}\nv_permlane16_swap_b32 v{d+1}, v{d+3}')
        E.i(f'buffer_store_dwordx4 {R4(d)}, v21, s[88:91], s{84+p} offen')
    E.i(stamp_code(3, stamps))
    if stamps:
        E.i('s_waitcnt vmcnt(0)')
        E.i(stamp_code(4, stamps))
        E.i(stamp_store(5, stamps, kidx))
    E.label(f'{name}_done')
    E.i('s_endpgm')
    lines = lines_of(P) + bl + lines_of(E)
    NV = max(NV, 200)
    return kernel_text(name, lines, NV, (NV + 3) // 4 * 4), (name, 256, 256, LDS), mo
```

```python
from asmlib import *

WS_XN, WS_O, WS_H, WS_HN, WS_HH, WS_STAMP = 0x0, 0x400000, 0x800000, 0xC00000, 0x1000000, 0x4000000

def stamp_code(idx, on):
    if not on: return ''
    return 's_memtime s[%d:%d]' % (60 + 2 * idx, 61 + 2 * idx)

def stamp_store(n, on, kidx, extra=()):
    if not on: return ''
    t = ['s_memrealtime s[58:59]', 's_waitcnt lgkmcnt(0)',
         's_lshl_b32 s56, s2, 8', 's_lshl_b32 s57, s10, 6', 's_add_u32 s56, s56, s57',
         's_add_u32 s80, s8, 0x%x' % (WS_STAMP + kidx * 0x10000), 's_addc_u32 s81, s9, 0',
         's_mov_b32 s82, 0x10000', 's_mov_b32 s83, 0x20000', 'v_mov_b32 v1, s56']
    for i in range(n):
        t += ['v_mov_b32 v2, s%d' % (60 + 2 * i), 'buffer_store_dword v2, v1, s[80:83], 0 offen offset:%d' % (4 * i)]
    t += ['v_mov_b32 v2, s58', 'buffer_store_dword v2, v1, s[80:83], 0 offen offset:%d' % (4 * n)]
    t += ['v_mov_b32 v2, s78', 'buffer_store_dword v2, v1, s[80:83], 0 offen offset:%d' % (4 * n + 4)]
    for j, e in enumerate(extra):
        t += ['v_mov_b32 v2, s%d' % (60 + 2 * e), 'buffer_store_dword v2, v1, s[80:83], 0 offen offset:%d' % (4 * n + 8 + 4 * j)]
    return '\n'.join(t)

def gen_k3(name='k3_kernel', NS=4, stamps=False, do_mfma=True, do_dma=True, do_t=True, do_rd=True, kidx=3):
    SLOT = 28800
    UPOFF = 14464
    ACC = 32
    WF = 0
    TF = 32
    for c in range(896): assert (c * 4682) >> 16 == c // 14
    P = Stream()
    P.i(f"""
    s_cmp_ge_u32 s2, 256
    s_cbranch_scc1 {name}_done
    s_load_dwordx4 s[4:7], s[0:1], 32
    s_load_dwordx2 s[8:9], s[0:1], 72
    """)
    if stamps: P.i('s_memrealtime s[78:79]')
    P.i(stamp_code(0, stamps))
    P.i("""
    v_lshrrev_b32 v1, 6, v0
    v_and_b32 v0, 63, v0
    v_readfirstlane_b32 s10, v1
    s_and_b32 s11, s2, 7
    s_lshr_b32 s28, s2, 3
    s_and_b32 s29, s11, 1
    s_lshl_b32 s29, s29, 2
    s_and_b32 s30, s28, 3
    s_add_u32 s29, s29, s30          ; mt
    s_lshr_b32 s30, s11, 1
    s_lshl_b32 s30, s30, 3
    s_lshr_b32 s31, s28, 2
    s_add_u32 s30, s30, s31          ; nt
    s_and_b32 s31, s10, 1            ; half
    s_mul_i32 s32, s31, 448          ; half*7*64
    v_add_u32 v1, s32, v0
    s_movk_i32 s33, 4682
    s_movk_i32 s34, 7168-224
    """)
    for i in range(7):
        P.i(f"""
        v_add_u32 v11, {64*i}, v1
        v_mul_lo_u32 v12, v11, s33
        v_lshrrev_b32 v12, 16, v12
        v_mul_lo_u32 v12, v12, s34
        v_lshl_add_u32 v{2+i}, v11, 4, v12
        v_subrev_u32 v{2+i}, {(i%4)*1024}, v{2+i}
        """)
    P.i(f"""
    v_lshlrev_b32 v10, 4, v0         ; lane*16
    s_waitcnt lgkmcnt(0)
    s_cmp_ge_u32 s10, 2
    s_cselect_b32 s12, s6, s4
    s_cselect_b32 s13, s7, s5
    s_mul_i32 s35, s30, 224
    s_add_u32 s12, s12, s35
    s_addc_u32 s13, s13, 0
    s_sub_u32 s14, {1024*7168}, s35
    s_mov_b32 s15, 0x20000
    s_lshl_b32 s36, s29, 3
    s_lshl_b32 s37, s10, 1
    s_add_u32 s36, s36, s37          ; tb0
    s_lshl_b32 s37, s36, 16
    s_add_u32 s37, s37, 0x{WS_HN:x}
    s_add_u32 s16, s8, s37
    s_addc_u32 s17, s9, 0
    s_mov_b32 s18, 0x10000
    s_mov_b32 s19, 0x20000
    s_add_u32 s20, s16, 0x10000
    s_addc_u32 s21, s17, 0
    s_mov_b32 s22, 0x10000
    s_mov_b32 s23, 0x20000
    s_lshr_b32 s38, s10, 1
    s_mul_i32 s38, s38, {UPOFF}
    s_mul_i32 s39, s31, 7168
    s_add_u32 s38, s38, s39
    """)
    def dma(st, stage, i):
        if do_dma:
            st.vm(('W', stage, i), f'buffer_load_dwordx4 v{2+i}, s[12:15], s40 offen offset:{(i%4)*1024} lds')
        else:
            st.vm(('W', stage, i), 's_nop 0')
    def tload(st, stage, ks, tb, imm):
        r = TF + ((stage & 1) * 8 + ks * 2 + tb) * 4
        if do_t:
            st.vm(('T', stage, ks, tb), f'buffer_load_dwordx4 a[{r}:{r+3}], v10, s[{16+4*tb}:{19+4*tb}], s42 offen offset:{imm}')
        else:
            st.vm(('T', stage, ks, tb), 's_nop 0')
    def wread(st, stage, ks, j, q):
        r = WF + 4 * j + 2 * q
        if do_rd:
            st.lg(('R', stage, ks, j, q), f'ds_read_b64_tr_b16 a[{r}:{r+1}], v13 offset:{(16*ks+4*q)*224+32*j}')
        else:
            st.lg(('R', stage, ks, j, q), 's_nop 0')
    PRO_SLOT = len(P.items)
    P.i(f"""
    v_bfe_u32 v11, v0, 4, 1
    v_mul_u32_u24 v9, {UPOFF}, v11
    v_lshrrev_b32 v11, 5, v0
    v_lshlrev_b32 v11, 3, v11
    v_bfe_u32 v12, v0, 2, 2
    v_add_u32 v11, v11, v12
    v_mul_u32_u24 v11, 224, v11
    v_add_u32 v9, v9, v11
    v_and_b32 v11, 1, v0
    v_lshl_add_u32 v9, v11, 4, v9
    v_bfe_u32 v11, v0, 1, 1
    v_lshl_add_u32 v9, v11, 3, v9
    v_mov_b32 v13, v9
    """)
    for r in range(224): P.i(f'v_mov_b32 v{ACC+r}, 0')
    P.i('PROWAIT\ns_barrier')
    P.i(stamp_code(1, stamps))
    for j in range(6):
        for q in range(2): wread(P, 0, 0, j, q)

    def body(it):
        B = Stream()
        B.label(f'{name}_loop')
        for sl in range(2):
            s = it * 2 + sl
            for ks in range(4):
                fill = [[] for _ in range(14)]
                def nxt(s, ks): return (s, ks + 1) if ks < 3 else (s + 1, 0)
                ns, nks = nxt(s, ks)
                for j in range(7):
                    for q in range(2):
                        if j == 0: fill[q].append(lambda B=B, s=s, ks=ks, q=q: wread(B, s, ks, 6, q))
                        else: fill[2*j+q].append(lambda B=B, ns=ns, nks=nks, j=j, q=q: wread(B, ns, nks, j - 1, q))
                ts, tks = (s + 1, 3) if ks == 0 else (s + 2, ks - 1)
                fill[1].append(lambda: tload(B, ts, tks, 0, ks * 1024))
                fill[5].append(lambda: tload(B, ts, tks, 1, ks * 1024))
                if ks == 3:
                    ds = s + NS - 1; pieces = [0, 1]
                else:
                    ds = s + NS - 2; pieces = [[2, 3], [4, 5], [6]][ks]
                if ks == 3:
                    fill[2].append(lambda: B.i(f"""
                      s_add_u32 s41, s41, {SLOT}
                      s_cmp_eq_u32 s41, {NS*SLOT}
                      s_cselect_b32 s41, 0, s41"""))
                    fill[3].append(lambda: B.i(f's_add_u32 s40, s40, {64*7168}\ns_add_u32 m0, s41, s38'))
                    fill[13].append(lambda: B.i('s_add_u32 s42, s42, 4096'))
                if ks == 1:
                    fill[7].append(lambda: B.i('s_add_u32 m0, m0, 4096'))
                if ks == 2:
                    fill[10].append(lambda: B.i(f"""
                      s_add_u32 s43, s43, {SLOT}
                      s_cmp_eq_u32 s43, {NS*SLOT}
                      s_cselect_b32 s43, 0, s43"""))
                for n, p in enumerate(pieces):
                    fill[8 + 4 * n].append(lambda p=p: dma(B, ds, p))
                B.wvm([('T', s, ks, 0), ('T', s, ks, 1)])
                for j in range(7):
                    if ks == 3 and j == 1:
                        B.wvm([('W', s + 1, i) for i in range(7)])
                        B.i('s_barrier')
                        B.i('v_add_u32 v13, s43, v9')
                    B.wlg(('R', s, ks, j, 1))
                    for tb in range(2):
                        a = ACC + (j * 2 + tb) * 16
                        t = TF + ((s & 1) * 8 + ks * 2 + tb) * 4
                        w = WF + 4 * j
                        if do_mfma:
                            B.i(f'v_mfma_f32_32x32x16_bf16 v[{a}:{a+15}], a[{w}:{w+3}], a[{t}:{t+3}], v[{a}:{a+15}]')
                        else:
                            B.i('s_nop 0')
                        for f in fill[2*j+tb]: f()
        B.i(f's_add_u32 s44, s44, 1\ns_cmp_lt_u32 s44, 8\ns_cbranch_scc1 {name}_loop')
        return B
    L = Stream()
    for it in range(-3, 0):
        for x in body(it).items:
            if x[0] == 'vm' and x[1][1] >= 0:
                tg = x[1]
                if tg[0] == 'W':
                    L.i(f's_add_u32 m0, s38, {tg[1]*SLOT + (4096 if tg[2] >= 4 else 0)}\ns_mov_b32 s40, {tg[1]*64*7168}')
                    dma(L, tg[1], tg[2])
                else:
                    L.i(f's_mov_b32 s42, {tg[1]*4096}')
                    tload(L, tg[1], tg[2], tg[3], tg[2] * 1024)
    L.i(f's_mov_b32 s42, 7168\ns_mov_b32 s41, {(NS-2)*SLOT}\ns_mov_b32 s43, 0\ns_mov_b32 s44, 0')
    vms = [x[1] for x in L.items if x[0] == 'vm']
    nafter = len(vms) - 1 - vms.index(('W', 0, 6))
    P.items[PRO_SLOT:PRO_SLOT] = L.items
    P.items = [('i', f's_waitcnt vmcnt({nafter})') if x == ('i', 'PROWAIT') else x for x in P.items]
    bl = resolve_loop(body)
    mo = verify(P, body, bl, 8)
    E = Stream()
    E.i(stamp_code(2, stamps))
    E.i(f"""
    s_mul_i32 s37, s36, {224*1024}
    s_mul_i32 s39, s30, 7168
    s_add_u32 s37, s37, s39
    s_add_u32 s37, s37, 0x{WS_HH:x}
    s_add_u32 s24, s8, s37
    s_addc_u32 s25, s9, 0
    s_mov_b32 s26, {2*224*1024}
    s_mov_b32 s27, 0x20000
    s_mov_b32 s45, 0xbfb8aa3b
    s_mov_b32 s46, 4096
    s_mov_b32 s47, {224*1024}
    s_mov_b32 s48, {224*1024+4096}
    s_nop 7
    """)
    for j in range(7):
        for tb in range(2):
            a = ACC + (j * 2 + tb) * 16
            for r in range(8): E.i(f'v_mul_f32 v{a+r}, s45, v{a+r}')
            for r in range(8): E.i(f'v_exp_f32 v{a+r}, v{a+r}')
            for r in range(8): E.i(f'v_add_f32 v{a+r}, 1.0, v{a+r}')
            for r in range(8): E.i(f'v_rcp_f32 v{a+r}, v{a+r}')
            for r in range(8): E.i(f'v_mul_f32 v{a+r}, v{a+r}, v{a+8+r}')
            for r in range(4): E.i(f'v_cvt_pk_bf16_f32 v{a+8+r}, v{a+2*r}, v{a+2*r+1}')
            so = ['0', 's46', 's47', 's48'][tb * 2 + (j >= 4)]
            E.i(f'buffer_store_dwordx4 v[{a+8}:{a+11}], v10, s[24:27], {so} offen offset:{(j%4)*1024}')
    E.i(stamp_code(3, stamps))
    if stamps:
        E.i('s_waitcnt vmcnt(0)')
        E.i(stamp_code(4, stamps))
        E.i(stamp_store(5, stamps, kidx))
    E.label(f'{name}_done')
    E.i('s_endpgm')
    lines = lines_of(P) + bl + lines_of(E)
    return kernel_text(name, lines, 256 + 96, 256), (name, 256, 256, NS * SLOT), mo

if __name__ == '__main__':
    import sys
    variants = {
        'k3_base': dict(NS=4, stamps=True),
        'k3_ns5': dict(NS=5, stamps=True),
        'k3_nomfma': dict(NS=4, stamps=True, do_mfma=False),
        'k3_noload': dict(NS=4, stamps=True, do_dma=False, do_t=False),
        'k3_mfmaonly': dict(NS=4, stamps=True, do_dma=False, do_t=False, do_rd=False),
    }
    for n, kw in variants.items():
        k, l, mo = gen_k3(**kw)
        open(n + '.s', 'w').write(file_text([l], [k]))
        print(n, 'max outstanding vm', mo)
```

```python
from asmlib import *
from k3 import WS_XN, WS_O, WS_H, WS_HN, WS_HH, WS_STAMP, stamp_code, stamp_store

def gen_k3b(name='k3_kernel', NS=4, stamps=False, do_mfma=True, do_dma=True, do_t=True, do_rd=True, kidx=3, accv=True, stagger=False):
    SLOT = 28672
    UPOFF = 14336
    if accv:
        ACC = lambda n: f'v[{32+4*n}:{35+4*n}]'
        WF = lambda n, lo=0, hi=3: f'a[{4*n+lo}:{4*n+hi}]'
        TF = lambda n: f'a[{32+4*n}:{35+4*n}]'
    else:
        ACC = lambda n: f'a[{4*n}:{3+4*n}]'
        WF = lambda n, lo=0, hi=3: f'v[{32+4*n+lo}:{32+4*n+hi}]'
        TF = lambda n: f'v[{64+4*n}:{67+4*n}]'
    for c in range(896): assert (c * 4682) >> 16 == c // 14
    P = Stream()
    P.i(f"""
    s_cmp_ge_u32 s2, 256
    s_cbranch_scc1 {name}_done
    s_load_dwordx4 s[4:7], s[0:1], 32
    s_load_dwordx2 s[8:9], s[0:1], 72
    """)
    if stamps: P.i('s_memrealtime s[78:79]')
    P.i(stamp_code(0, stamps))
    P.i("""
    v_lshrrev_b32 v1, 6, v0
    v_and_b32 v0, 63, v0
    v_readfirstlane_b32 s10, v1
    s_and_b32 s11, s2, 7
    s_lshr_b32 s28, s2, 3
    s_and_b32 s29, s11, 1
    s_lshl_b32 s29, s29, 2
    s_and_b32 s30, s28, 3
    s_add_u32 s29, s29, s30          ; mt
    s_lshr_b32 s30, s11, 1
    s_lshl_b32 s30, s30, 3
    s_lshr_b32 s31, s28, 2
    s_add_u32 s30, s30, s31          ; nt
    s_and_b32 s31, s10, 1            ; half
    s_mul_i32 s32, s31, 448          ; half*7*64
    v_add_u32 v1, s32, v0
    s_movk_i32 s33, 4682
    s_movk_i32 s34, 7168
    """)
    for i in range(7):
        P.i(f"""
        v_add_u32 v11, {64*i}, v1
        v_mul_lo_u32 v12, v11, s33
        v_lshrrev_b32 v12, 16, v12
        v_mul_u32_u24 v14, 14, v12
        v_sub_u32 v11, v11, v14
        v_and_b32 v14, 0x33, v12
        v_and_b32 v15, 4, v12
        v_lshl_add_u32 v14, v15, 1, v14
        v_and_b32 v15, 8, v12
        v_lshrrev_b32 v15, 1, v15
        v_add_u32 v14, v14, v15
        v_mul_lo_u32 v12, v14, s34
        v_lshl_add_u32 v{2+i}, v11, 4, v12
        v_subrev_u32 v{2+i}, {(i%4)*1024}, v{2+i}
        """)
    P.i(f"""
    v_lshlrev_b32 v10, 4, v0         ; lane*16
    s_waitcnt lgkmcnt(0)
    s_cmp_ge_u32 s10, 2
    s_cselect_b32 s12, s6, s4
    s_cselect_b32 s13, s7, s5
    s_mul_i32 s35, s30, 224
    s_add_u32 s12, s12, s35
    s_addc_u32 s13, s13, 0
    s_sub_u32 s14, {1024*7168}, s35
    s_mov_b32 s15, 0x20000
    s_lshl_b32 s36, s29, 4
    s_lshl_b32 s37, s10, 2
    s_add_u32 s36, s36, s37
    s_lshl_b32 s37, s36, 15
    s_add_u32 s37, s37, 0x{WS_HN:x}
    s_add_u32 s16, s8, s37
    s_addc_u32 s17, s9, 0
    s_mov_b32 s18, 0x8000
    s_mov_b32 s19, 0x20000
    """)
    for tb in range(1, 4):
        b = [16, 20, 84, 88][tb]
        P.i(f"""
        s_add_u32 s{b}, s16, {0x8000*tb}
        s_addc_u32 s{b+1}, s17, 0
        s_mov_b32 s{b+2}, 0x8000
        s_mov_b32 s{b+3}, 0x20000""")
    P.i(f"""
    s_lshr_b32 s38, s10, 1
    s_mul_i32 s38, s38, {UPOFF}
    s_mul_i32 s39, s31, 7168
    s_add_u32 s38, s38, s39
    """)
    def dma(st, stage, i):
        st.vm(('W', stage, i), f'buffer_load_dwordx4 v{2+i}, s[12:15], s40 offen offset:{(i%4)*1024} lds' if do_dma else 's_nop 0')
    def tload(st, stage, ks, tb, imm):
        b = [16, 20, 84, 88][tb]
        st.vm(('T', stage, ks, tb), f'buffer_load_dwordx4 {TF((stage&1)*8+ks*4+tb)}, v10, s[{b}:{b+3}], s42 offen offset:{imm}' if do_t else 's_nop 0')
    def wread(st, stage, ks, j, q):
        st.lg(('R', stage, ks, j, q), f'ds_read_b64_tr_b16 {WF(j%7, 2*q, 2*q+1)}, v13 offset:{(32*ks+8*q)*224+32*(j>>1)+(j&1)*UPOFF}' if do_rd else 's_nop 0')
    PRO_SLOT = len(P.items)
    P.i(f"""
    v_lshrrev_b32 v11, 5, v0
    v_lshlrev_b32 v11, 4, v11
    v_bfe_u32 v12, v0, 2, 3
    v_add_u32 v11, v11, v12
    v_mul_u32_u24 v9, 224, v11
    v_and_b32 v11, 3, v0
    v_lshl_add_u32 v9, v11, 3, v9
    v_mov_b32 v13, v9
    """)
    for r in range(224): P.i(f'v_mov_b32 v{32+r}, 0' if accv else f'v_accvgpr_write_b32 a{r}, 0')
    P.i('PROWAIT\ns_barrier')
    P.i(stamp_code(1, stamps))
    if stamps: P.i('s_memtime s[72:73]\ns_memrealtime s[74:75]\nv_mov_b32 v16, 0\nv_mov_b32 v17, 0')
    for j in range(6):
        for q in range(2): wread(P, 0, 0, j, q)

    def body(it):
        B = Stream()
        B.label(f'{name}_loop')
        for sl in range(2):
            s = it * 2 + sl
            for ks in range(2):
                fill = [[] for _ in range(56)]
                ns, nks = (s, 1) if ks == 0 else (s + 1, 0)
                for j in range(14):
                    jj = j + 6
                    for q in range(2):
                        if jj < 14: fill[4*j+1+q].append(lambda jj=jj, q=q: wread(B, s, ks, jj, q))
                        else: fill[4*j+1+q].append(lambda jj=jj, q=q: wread(B, ns, nks, jj - 14, q))
                ts, tks = (s + 1, 1) if ks == 0 else (s + 2, 0)
                for tb in range(4):
                    fill[3 + 12 * tb].append(lambda tb=tb: tload(B, ts, tks, tb, ks * 1024))
                if ks == 0:
                    ds = s + NS - 2
                    for n, p in enumerate([2, 3, 4, 5]):
                        fill[7 + 12 * n].append(lambda p=p: dma(B, ds, p))
                    fill[23].append(lambda: B.i('s_add_u32 m0, m0, 4096'))
                else:
                    fill[7].append(lambda: dma(B, s + NS - 2, 6))
                    fill[11].append(lambda: B.i(f"""
                      s_add_u32 s43, s43, {SLOT}
                      s_cmp_eq_u32 s43, {NS*SLOT}
                      s_cselect_b32 s43, 0, s43"""))
                    fill[19].append(lambda: B.i(f"""
                      s_add_u32 s41, s41, {SLOT}
                      s_cmp_eq_u32 s41, {NS*SLOT}
                      s_cselect_b32 s41, 0, s41"""))
                    fill[23].append(lambda: B.i(f's_add_u32 s40, s40, {64*7168}\ns_add_u32 m0, s41, s38'))
                    fill[35].append(lambda: dma(B, s + NS - 1, 0))
                    fill[47].append(lambda: dma(B, s + NS - 1, 1))
                    fill[55].append(lambda: B.i('s_add_u32 s42, s42, 2048'))
                B.wvm([('T', s, ks, tb) for tb in range(4)])
                for j in range(14):
                    if ks == 1 and j == 8:
                        B.wvm([('W', s + 1, i) for i in range(7)])
                        B.i('s_barrier')
                        B.i('v_add_u32 v13, s43, v9')
                    B.wlg(('R', s, ks, j, 1))
                    for tb in range(4):
                        a = ACC(j * 4 + tb)
                        B.i(f'v_mfma_f32_16x16x32_bf16 {a}, {WF(j%7)}, {TF((s&1)*8+ks*4+tb)}, {a}' if do_mfma else 's_nop 0')
                        for f in fill[4*j+tb]: f()
        if stamps:
            B.i('v_cmp_eq_u32 vcc, s44, v0\nv_mov_b32 v18, s72\nv_mov_b32 v19, s74\nv_cndmask_b32 v16, v16, v18, vcc\nv_cndmask_b32 v17, v17, v19, vcc\ns_memtime s[72:73]\ns_memrealtime s[74:75]')
        B.i(f's_add_u32 s44, s44, 1\ns_cmp_lt_u32 s44, 8\ns_cbranch_scc1 {name}_loop')
        return B
    L = Stream()
    for it in range(-3, 0):
        for x in body(it).items:
            if x[0] == 'vm' and x[1][1] >= 0:
                tg = x[1]
                if tg[0] == 'W':
                    L.i(f's_add_u32 m0, s38, {tg[1]*SLOT + (4096 if tg[2] >= 4 else 0)}\ns_mov_b32 s40, {tg[1]*64*7168}')
                    dma(L, tg[1], tg[2])
                else:
                    L.i(f's_mov_b32 s42, {tg[1]*2048}')
                    tload(L, tg[1], tg[2], tg[3], tg[2] * 1024)
    L.i(f's_mov_b32 s42, 3072\ns_mov_b32 s41, {(NS-2)*SLOT}\ns_mov_b32 s43, 0\ns_mov_b32 s44, 0')
    vms = [x[1] for x in L.items if x[0] == 'vm']
    nafter = len(vms) - 1 - vms.index(('W', 0, 6))
    P.items[PRO_SLOT:PRO_SLOT] = L.items
    P.items = [('i', f's_waitcnt vmcnt({nafter})') if x == ('i', 'PROWAIT') else x for x in P.items]
    bl = resolve_loop(body)
    mo = verify(P, body, bl, 8)
    E = Stream()
    E.i(stamp_code(2, stamps))
    E.i(f"""
    s_mul_i32 s37, s36, {448*256}
    s_mul_i32 s39, s30, {14*256}
    s_add_u32 s37, s37, s39
    s_add_u32 s37, s37, 0x{WS_HH:x}
    s_add_u32 s24, s8, s37
    s_addc_u32 s25, s9, 0
    s_mov_b32 s26, {4*448*256}
    s_mov_b32 s27, 0x20000
    s_mov_b32 s45, 0xbfb8aa3b
    s_mov_b32 s47, {2*448*256}
    v_bfe_u32 v11, v0, 4, 1
    s_mov_b32 s46, {448*256}
    v_mul_lo_u32 v11, v11, s46
    v_lshrrev_b32 v12, 5, v0
    v_lshl_add_u32 v11, v12, 8, v11
    v_and_b32 v12, 15, v0
    v_lshl_add_u32 v11, v12, 4, v11
    s_nop 7
    """)
    for jb in range(7):
        for pr in range(2):
            if accv:
                g0 = 32 + 4 * (8 * jb + 2 * pr); u0 = g0 + 16
            else:
                g0 = 16 + 0; u0 = 24
                ag = 4 * (8 * jb + 2 * pr)
                g0 = 128 + ((jb * 2 + pr) % 4) * 16; u0 = g0 + 8
                for r in range(8): E.i(f'v_accvgpr_read_b32 v{g0+r}, a{ag+r}')
                for r in range(8): E.i(f'v_accvgpr_read_b32 v{u0+r}, a{ag+16+r}')
            for r in range(8): E.i(f'v_mul_f32 v{g0+r}, s45, v{g0+r}')
            for r in range(8): E.i(f'v_exp_f32 v{g0+r}, v{g0+r}')
            for r in range(8): E.i(f'v_add_f32 v{g0+r}, 1.0, v{g0+r}')
            for r in range(8): E.i(f'v_rcp_f32 v{g0+r}, v{g0+r}')
            for r in range(8): E.i(f'v_mul_f32 v{g0+r}, v{g0+r}, v{u0+r}')
            for r in range(4): E.i(f'v_cvt_pk_bf16_f32 v{u0+r}, v{g0+2*r}, v{g0+2*r+1}')
            E.i('s_nop 1')
            E.i(f'v_permlane16_swap_b32 v{u0}, v{u0+2}')
            E.i(f'v_permlane16_swap_b32 v{u0+1}, v{u0+3}')
            E.i(f'buffer_store_dwordx4 v[{u0}:{u0+3}], v11, s[24:27], {"s47" if pr else "0"} offen offset:{jb*512}')
    E.i(stamp_code(3, stamps))
    if stamps:
        E.i('s_waitcnt vmcnt(0)')
        E.i(stamp_code(4, stamps))
        E.i(stamp_store(5, stamps, kidx))
        E.i('''v_writelane_b32 v16, s72, 8
        v_writelane_b32 v17, s74, 8
        v_writelane_b32 v16, s68, 9
        v_writelane_b32 v17, s58, 9
        v_writelane_b32 v16, s60, 10
        v_writelane_b32 v17, s78, 10
        s_add_u32 s80, s80, 0x100000
        s_addc_u32 s81, s81, 0
        s_mov_b32 s82, 0x100000
        s_lshl_b32 s56, s56, 3
        v_lshl_add_u32 v1, v0, 2, s56
        buffer_store_dword v16, v1, s[80:83], 0 offen
        buffer_store_dword v17, v1, s[80:83], 0 offen offset:256''')
    E.label(f'{name}_done')
    E.i('s_endpgm')
    lines = lines_of(P) + bl + lines_of(E)
    return kernel_text(name, lines, 256 + (96 if accv else 224), 256), (name, 256, 256, NS * SLOT), mo

if __name__ == '__main__':
    variants = {
        'k3b_base': dict(NS=4, stamps=True),
        'k3b_nomfma': dict(NS=4, stamps=True, do_mfma=False),
        'k3b_noload': dict(NS=4, stamps=True, do_dma=False, do_t=False),
    }
    for n, kw in variants.items():
        k, l, mo = gen_k3b(**kw)
        open(n + '.s', 'w').write(file_text([l], [k]))
        print(n, 'max outstanding vm', mo)
```

```python
from asmlib import *
from k3 import WS_XN, WS_O, WS_H, WS_HN, WS_HH, WS_STAMP, stamp_code, stamp_store

def gen_k4(name='k4_kernel', K=3584, w_arg=48, t_ws=WS_HH, mode='final', NS=4, DT=4, stamps=False,
           do_mfma=True, do_dma=True, do_t=True, do_rd=True, kidx=4, tmap=0, wflag='', tflag=''):
    SLOT = 16384
    NST = K // 128
    assert NST % DT == 0
    TROW = (K // 8) * 256
    ACC = lambda n: f'v[{32+4*n}:{35+4*n}]'
    WF = lambda n, lo=0, hi=3: f'v[{64+4*n+lo}:{64+4*n+hi}]'
    TF = lambda n: f'v[{96+4*n}:{99+4*n}]'
    NV = 96 + DT * 32
    P = Stream()
    P.i(f"""
    s_cmp_ge_u32 s2, 256
    s_cbranch_scc1 {name}_done
    s_load_dwordx2 s[4:5], s[0:1], {w_arg}
    s_load_dwordx2 s[6:7], s[0:1], {56 if mode == 'final' else 0}
    s_load_dwordx2 s[8:9], s[0:1], 72
    """)
    if stamps: P.i('s_memrealtime s[78:79]')
    P.i(stamp_code(0, stamps))
    P.i(f"""
    v_lshrrev_b32 v1, 6, v0
    v_and_b32 v0, 63, v0
    v_readfirstlane_b32 s10, v1
    s_and_b32 s11, s2, 7
    s_lshr_b32 s28, s2, 3
    s_and_b32 s29, s11, 3
    s_lshl_b32 s29, s29, 2
    {'s_and_b32 s30, s28, 3' if tmap == 0 else 's_lshr_b32 s30, s28, 3'}
    s_add_u32 s29, s29, s30          ; mt (0..15)
    s_lshr_b32 s30, s11, 2
    s_lshl_b32 s30, s30, 3
    {'s_lshr_b32 s31, s28, 2' if tmap == 0 else 's_and_b32 s31, s28, 7'}
    s_add_u32 s30, s30, s31          ; nt (0..15)
    v_lshlrev_b32 v10, 4, v0         ; lane*16
    v_lshrrev_b32 v11, 5, v0
    v_lshlrev_b32 v11, 3, v11
    v_bfe_u32 v12, v0, 3, 2
    v_add_u32 v11, v11, v12
    s_lshl_b32 s32, s10, 5
    v_add_u32 v11, s32, v11
    v_lshlrev_b32 v11, 11, v11
    v_bfe_u32 v12, v0, 4, 2
    v_lshlrev_b32 v12, 1, v12
    v_and_b32 v14, 7, v0
    v_xor_b32 v12, v12, v14
    v_lshl_add_u32 v2, v12, 4, v11
    v_add_u32 v3, {4*2048-1024}, v2
    v_add_u32 v4, {16*2048-2048}, v2
    v_add_u32 v5, {20*2048-3072}, v2
    s_lshl_b32 s38, s10, 12
    s_lshl_b32 s36, s29, 3
    s_lshl_b32 s37, s10, 1
    s_add_u32 s36, s36, s37
    s_mul_i32 s37, s36, {TROW}
    s_add_u32 s37, s37, 0x{t_ws:x}
    s_lshl_b32 s35, s30, 7
    s_waitcnt lgkmcnt(0)
    s_add_u32 s12, s4, s35
    s_addc_u32 s13, s5, 0
    s_sub_u32 s14, {K*2048}, s35
    s_mov_b32 s15, 0x20000
    s_add_u32 s16, s8, s37
    s_addc_u32 s17, s9, 0
    s_mov_b32 s18, {TROW}
    s_mov_b32 s19, 0x20000
    s_add_u32 s20, s16, {TROW}
    s_addc_u32 s21, s17, 0
    s_mov_b32 s22, {TROW}
    s_mov_b32 s23, 0x20000
    """)
    def dma(st, stage, i):
        st.vm(('W', stage, i), f'buffer_load_dwordx4 v{2+i}, s[12:15], s40 offen offset:{i*1024} {wflag} lds' if do_dma else 's_nop 0')
    def tload(st, stage, ks, tb, imm):
        b = 16 + 4 * tb
        st.vm(('T', stage, ks, tb), f'buffer_load_dwordx4 {TF((stage%DT)*8+ks*2+tb)}, v10, s[{b}:{b+3}], s42 offen offset:{imm} {tflag}' if do_t else 's_nop 0')
    def wread(st, stage, ks, j, q):
        st.lg(('R', stage, ks, j, q), f'ds_read_b64_tr_b16 {WF((ks*4+j)%8, 2*q, 2*q+1)}, v{16+j} offset:{(32*ks+8*q)*128}' if do_rd else 's_nop 0')
    PRO_SLOT = len(P.items)
    P.i(f"""
    v_lshrrev_b32 v11, 5, v0
    v_lshlrev_b32 v11, 4, v11
    v_bfe_u32 v12, v0, 2, 3
    v_add_u32 v11, v11, v12
    v_lshlrev_b32 v11, 7, v11
    v_and_b32 v12, 3, v0
    v_lshl_add_u32 v11, v12, 3, v11
    v_bfe_u32 v12, v0, 3, 2
    """)
    for j in range(4):
        P.i(f'v_xor_b32 v14, {j}, v12\nv_lshl_add_u32 v{20+j}, v14, 5, v11\nv_mov_b32 v{16+j}, v{20+j}')
    for r in range(32): P.i(f'v_mov_b32 v{32+r}, 0')
    P.i('PROWAIT\ns_barrier')
    P.i(stamp_code(1, stamps))
    LAG = 6
    for n in range(LAG):
        for q in range(2): wread(P, 0, n // 4, n % 4, q)

    def body(it):
        B = Stream()
        B.label(f'{name}_loop')
        for sl in range(DT):
            s = it * DT + sl
            for ks in range(4):
                fill = [[] for _ in range(8)]
                for j in range(4):
                    n = ks * 4 + j + LAG
                    rs, rks, rj = s + n // 16, (n % 16) // 4, n % 4
                    for q in range(2):
                        fill[2*j+q].append(lambda rs=rs, rks=rks, rj=rj, q=q: wread(B, rs, rks, rj, q))
                ts, tks = (s + DT - 1, 3) if ks == 0 else (s + DT, ks - 1)
                fill[1].append(lambda: tload(B, ts, tks, 0, ks * 1024))
                fill[3].append(lambda: tload(B, ts, tks, 1, ks * 1024))
                if ks >= 2: fill[6].append(lambda: dma(B, s + NS - 1, ks - 2))
                else: fill[6].append(lambda: dma(B, s + NS - 2, ks + 2))
                if ks == 1:
                    fill[7].append(lambda: B.i(f"""
                      s_add_u32 s43, s43, {SLOT}
                      s_and_b32 s43, s43, {NS*SLOT-1}""" if NS & (NS-1) == 0 else f"""
                      s_add_u32 s43, s43, {SLOT}
                      s_cmp_eq_u32 s43, {NS*SLOT}
                      s_cselect_b32 s43, 0, s43"""))
                if ks == 2:
                    fill[0].append(lambda: B.i(f"""
                      s_add_u32 s41, s41, {SLOT}
                      s_cmp_eq_u32 s41, {NS*SLOT}
                      s_cselect_b32 s41, 0, s41"""))
                    fill[2].append(lambda: B.i(f's_add_u32 s40, s40, {128*2048}\ns_add_u32 m0, s41, s38'))
                if ks == 3:
                    fill[7].append(lambda: B.i('s_add_u32 s42, s42, 4096'))
                B.wvm([('T', s, ks, tb) for tb in range(2)])
                for j in range(4):
                    if ks == 2 and j == 2:
                        B.wvm([('W', s + 1, i) for i in range(4)])
                        B.i('s_barrier')
                        for jj in range(4): B.i(f'v_add_u32 v{16+jj}, s43, v{20+jj}')
                    B.wlg(('R', s, ks, j, 1))
                    for tb in range(2):
                        a = ACC(j * 2 + tb)
                        B.i(f'v_mfma_f32_16x16x32_bf16 {a}, {WF((ks*4+j)%8)}, {TF((s%DT)*8+ks*2+tb)}, {a}' if do_mfma else 's_nop 0')
                        for f in fill[2*j+tb]: f()
        B.i(f's_add_u32 s44, s44, 1\ns_cmp_lt_u32 s44, {NST//DT}\ns_cbranch_scc1 {name}_loop')
        return B
    L = Stream()
    for it in range(-3, 0):
        for x in body(it).items:
            if x[0] == 'vm' and x[1][1] >= 0:
                tg = x[1]
                if tg[0] == 'W':
                    L.i(f's_add_u32 m0, s38, {tg[1]*SLOT}\ns_mov_b32 s40, {tg[1]*128*2048}')
                    dma(L, tg[1], tg[2])
                else:
                    L.i(f's_mov_b32 s42, {tg[1]*4096}')
                    tload(L, tg[1], tg[2], tg[3], tg[2] * 1024)
    L.i(f's_mov_b32 s42, {(DT-1)*4096+3072}\ns_mov_b32 s41, {(NS-2)*SLOT}\ns_mov_b32 s43, 0\ns_mov_b32 s44, 0')
    vms = [x[1] for x in L.items if x[0] == 'vm']
    nafter = len(vms) - 1 - vms.index(('W', 0, 3))
    P.items[PRO_SLOT:PRO_SLOT] = L.items
    P.items = [('i', f's_waitcnt vmcnt({nafter})') if x == ('i', 'PROWAIT') else x for x in P.items]
    bl = resolve_loop(body)
    mo = verify(P, body, bl, NST // DT)
    E = Stream()
    E.i(stamp_code(2, stamps))
    E.i(f"""
    v_bfe_u32 v13, v0, 4, 1
    v_add_u32 v13, s36, v13          ; tb16
    v_and_b32 v14, 15, v0            ; t
    v_lshrrev_b32 v15, 5, v0         ; g>>1
    v_lshl_add_u32 v11, v13, 4, v14  ; token
    v_lshlrev_b32 v11, 11, v11
    v_lshl_add_u32 v11, v15, 4, v11
    v_add_u32 v11, s35, v11          ; + nt*128
    v_lshlrev_b32 v12, 15, v13
    v_lshl_add_u32 v12, v15, 8, v12
    v_lshl_add_u32 v12, v14, 4, v12
    s_lshl_b32 s39, s30, 11
    v_add_u32 v12, s39, v12
    s_mov_b32 s24, s6
    s_mov_b32 s25, s7
    s_mov_b32 s26, {2048*2048}
    s_mov_b32 s27, 0x20000
    s_add_u32 s84, s8, 0x{WS_H:x}
    s_addc_u32 s85, s9, 0
    s_mov_b32 s86, {2048*2048}
    s_mov_b32 s87, 0x20000
    s_waitcnt vmcnt(0) lgkmcnt(0)
    """)
    rm = lambda op, regs, j: f'{op} {regs}, v11, s[24:27], 0 offen offset:{32*j}'
    um = lambda op, regs, j: f'{op} {regs}, v12, s[84:87], 0 offen offset:{512*j}'
    ld, stt = (um, rm) if mode == 'final' else (rm, um)
    for j in range(4): E.i(ld('buffer_load_dwordx4', f'v[{96+4*j}:{99+4*j}]', j))
    for j in range(4):
        a = 32 + 8 * j
        for r in range(4): E.i(f'v_permlane16_swap_b32 v{a+r}, v{a+4+r}')
    for j in range(4):
        a = 32 + 8 * j
        E.i(f's_waitcnt vmcnt({3})')
        for r in range(4):
            E.i(f'v_lshlrev_b32 v13, 16, v{96+4*j+r}\nv_and_b32 v14, 0xffff0000, v{96+4*j+r}')
            E.i(f'v_add_f32 v{a+2*r}, v{a+2*r}, v13\nv_add_f32 v{a+2*r+1}, v{a+2*r+1}, v14')
        for r in range(4): E.i(f'v_cvt_pk_bf16_f32 v{64+4*j+r}, v{a+2*r}, v{a+2*r+1}')
        E.i(stt('buffer_store_dwordx4', f'v[{64+4*j}:{67+4*j}]', j))
    E.i(stamp_code(3, stamps))
    if stamps:
        E.i('s_waitcnt vmcnt(0)')
        E.i(stamp_code(4, stamps))
        E.i(stamp_store(5, stamps, kidx))
    E.label(f'{name}_done')
    E.i('s_endpgm')
    lines = lines_of(P) + bl + lines_of(E)
    return kernel_text(name, lines, NV, (NV + 3) // 4 * 4), (name, 256, 256, NS * SLOT), mo

if __name__ == '__main__':
    variants = {
        'k4_base': dict(NS=4, DT=4, stamps=True),
        'k4_ns6': dict(NS=6, DT=4, stamps=True),
        'k4_dt2': dict(NS=4, DT=2, stamps=True),
        'k4_dt2m': dict(NS=4, DT=2, stamps=True, tmap=1),
        'k4_nomfma': dict(NS=6, DT=4, stamps=True, do_mfma=False),
        'k4_nodma': dict(NS=6, DT=4, stamps=True, do_mfma=False, do_dma=False),
        'k4_not': dict(NS=6, DT=4, stamps=True, do_mfma=False, do_t=False),
        'k4_not_nt': dict(NS=6, DT=4, stamps=True, do_mfma=False, do_t=False, wflag='nt'),
        'k4_not_sc1': dict(NS=6, DT=4, stamps=True, do_mfma=False, do_t=False, wflag='sc1'),
        'k4_not_sc01': dict(NS=6, DT=4, stamps=True, do_mfma=False, do_t=False, wflag='sc0 sc1'),
        'k4_wsc1': dict(NS=4, DT=2, stamps=True, wflag='sc1'),
        'k4_wtsc1': dict(NS=4, DT=2, stamps=True, wflag='sc1', tflag='sc1'),
        'k4_wnt': dict(NS=4, DT=2, stamps=True, wflag='nt'),
        'k4_noload': dict(NS=4, stamps=True, do_dma=False, do_t=False),
    }
    for n, kw in variants.items():
        k, l, mo = gen_k4(**kw)
        open(n + '.s', 'w').write(file_text([l], [k]))
        print(n, 'max outstanding vm', mo)
```

```python
from asmlib import *
from k3 import WS_XN, WS_O, WS_H, WS_HN, WS_HH, WS_STAMP

def xsum(v, tmp):
    return f"""
    s_nop 1
    v_add_f32_dpp v{v}, v{v}, v{v} row_ror:8 row_mask:0xf bank_mask:0xf
    v_mov_b32 v{tmp}, v{v}
    s_nop 1
    v_permlane16_swap_b32 v{v}, v{tmp}
    v_add_f32 v{v}, v{v}, v{tmp}
    v_mov_b32 v{tmp}, v{v}
    s_nop 1
    v_permlane32_swap_b32 v{v}, v{tmp}
    v_add_f32 v{v}, v{v}, v{tmp}
    """

def gen_ln(name, src, dst_ws):
    P = Stream()
    P.i(f"""
    s_cmp_ge_u32 s2, 256
    s_cbranch_scc1 {name}_done
    s_load_dwordx2 s[4:5], s[0:1], 0
    s_load_dwordx2 s[8:9], s[0:1], 72
    v_and_b32 v1, 7, v0              ; t
    v_lshrrev_b32 v2, 6, v0          ; wave
    v_bfe_u32 v3, v0, 3, 3           ; g
    v_lshl_add_u32 v3, v2, 5, v3     ; kc0 = 32w + g
    s_lshl_b32 s10, s2, 3
    v_add_u32 v4, s10, v1            ; token
    v_lshlrev_b32 v5, 11, v4
    v_lshl_add_u32 v5, v3, 4, v5
    v_lshrrev_b32 v6, 4, v4
    v_lshlrev_b32 v6, 15, v6
    v_lshl_add_u32 v6, v3, 8, v6
    v_and_b32 v7, 15, v4
    v_lshl_add_u32 v6, v7, 4, v6
    v_add_u32 v8, 4096, v6
    v_lshlrev_b32 v9, 2, v1
    v_lshl_add_u32 v10, v2, 5, v9
    s_waitcnt lgkmcnt(0)
    """)
    if src == 'x':
        P.i('s_mov_b32 s12, s4\ns_mov_b32 s13, s5')
    else:
        P.i(f's_add_u32 s12, s8, 0x{src:x}\ns_addc_u32 s13, s9, 0')
    P.i(f"""
    s_mov_b32 s14, 0x400000
    s_mov_b32 s15, 0x20000
    s_add_u32 s16, s8, 0x{dst_ws:x}
    s_addc_u32 s17, s9, 0
    s_mov_b32 s18, 0x400000
    s_mov_b32 s19, 0x20000
    """)
    for i in range(4):
        if src == 'x':
            P.i(f'buffer_load_dwordx4 v[{16+4*i}:{19+4*i}], v5, s[12:15], 0 offen offset:{128*i}')
        else:
            P.i(f'buffer_load_dwordx4 v[{16+4*i}:{19+4*i}], v{6 if i < 2 else 8}, s[12:15], 0 offen offset:{2048*(i%2)}')
    P.i('s_waitcnt vmcnt(0)')
    for r in range(16):
        P.i(f'v_lshlrev_b32 v{32+2*r}, 16, v{16+r}\nv_and_b32 v{33+2*r}, 0xffff0000, v{16+r}')
    P.i('v_add_f32 v11, v32, v33')
    for r in range(2, 32): P.i(f'v_add_f32 v11, v11, v{32+r}')
    P.i(xsum(11, 12))
    P.i("""
    ds_write_b32 v10, v11
    s_waitcnt lgkmcnt(0)
    s_barrier
    ds_read_b32 v11, v9
    ds_read_b32 v12, v9 offset:32
    ds_read_b32 v13, v9 offset:64
    ds_read_b32 v14, v9 offset:96
    s_waitcnt lgkmcnt(0)
    v_add_f32 v11, v11, v12
    v_add_f32 v13, v13, v14
    v_add_f32 v11, v11, v13
    v_mul_f32 v11, 0x3a800000, v11    ; mean
    """)
    for r in range(32): P.i(f'v_sub_f32 v{32+r}, v{32+r}, v11')
    P.i('v_mul_f32 v11, v32, v32')
    for r in range(1, 32): P.i(f'v_fmac_f32 v11, v{32+r}, v{32+r}')
    P.i(xsum(11, 12))
    P.i("""
    ds_write_b32 v10, v11 offset:128
    s_waitcnt lgkmcnt(0)
    s_barrier
    ds_read_b32 v11, v9 offset:128
    ds_read_b32 v12, v9 offset:160
    ds_read_b32 v13, v9 offset:192
    ds_read_b32 v14, v9 offset:224
    s_waitcnt lgkmcnt(0)
    v_add_f32 v11, v11, v12
    v_add_f32 v13, v13, v14
    v_add_f32 v11, v11, v13
    v_mov_b32 v12, 0x3727c5ac
    v_fmac_f32 v12, 0x3a800000, v11
    v_rsq_f32 v12, v12
    s_nop 0
    """)
    for r in range(32): P.i(f'v_mul_f32 v{32+r}, v{32+r}, v12')
    for r in range(16): P.i(f'v_cvt_pk_bf16_f32 v{16+r}, v{32+2*r}, v{33+2*r}')
    for i in range(4):
        P.i(f'buffer_store_dwordx4 v[{16+4*i}:{19+4*i}], v{6 if i < 2 else 8}, s[16:19], 0 offen offset:{2048*(i%2)}')
    P.label(f'{name}_done')
    P.i('s_endpgm')
    return kernel_text(name, lines_of(P), 64, 64, 32), (name, 256, 256, 256)
```

```python
import sys
from asmlib import *
from k3 import WS_XN, WS_O, WS_H, WS_HN, WS_HH
from ln import gen_ln
from k1 import gen_k1
from k3b import gen_k3b
from k4 import gen_k4
def build(stamps):
    ks = [gen_ln('ln1_kernel', 'x', WS_XN),
          gen_k1(stamps=stamps)[:2],
          gen_k4('k2_kernel', K=1024, w_arg=16, t_ws=WS_O, mode='h', NS=4, DT=2, stamps=stamps, kidx=2)[:2],
          gen_ln('ln2_kernel', WS_H, WS_HN),
          gen_k3b(stamps=stamps)[:2],
          gen_k4(NS=4, DT=2, stamps=stamps)[:2]]
    return file_text([k[1] for k in ks], [k[0] for k in ks])
open('all_st.s', 'w').write(build(True))
open('all.s', 'w').write(build(False))
```

```python
class Stream:
    def __init__(self):
        self.items = []
    def i(self, text):
        for t in text.strip().split('\n'):
            t = t.strip()
            if t:
                self.items.append(('i', t))
    def vm(self, tag, text): self.items.append(('vm', tag, text))
    def lg(self, tag, text): self.items.append(('lg', tag, text))
    def wvm(self, tag): self.items.append(('wvm', tag))
    def wlg(self, tag): self.items.append(('wlg', tag))
    def label(self, n): self.items.append(('label', n))
    def extend(self, o): self.items.extend(o.items)

def resolve_loop(body_fn, niter_virtual=6):
    vm, lg = [], []
    out = None
    for it in range(niter_virtual):
        st = body_fn(it)
        lines = []
        for x in st.items:
            if x[0] == 'i': lines.append(x[1])
            elif x[0] == 'label': lines.append(x[1] + ':')
            elif x[0] == 'vm': vm.append(x[1]); lines.append(x[2])
            elif x[0] == 'lg': lg.append(x[1]); lines.append(x[2])
            elif x[0] in ('wvm', 'wlg'):
                q = vm if x[0] == 'wvm' else lg
                tags = x[1] if isinstance(x[1], list) else [x[1]]
                idx = [max(i for i, t in enumerate(q) if t == tg) if tg in q else None for tg in tags]
                if None in idx:
                    n = None
                else:
                    n = len(q) - 1 - max(idx)
                lines.append(('W', x[0], n))
        out = lines
    res = []
    for l in out:
        if isinstance(l, tuple):
            assert l[2] is not None
            if l[1] == 'wvm':
                res.append('s_waitcnt vmcnt(%d)' % min(l[2], 63))
            else:
                res.append('s_waitcnt lgkmcnt(%d)' % min(l[2], 15))
        else:
            res.append(l)
    return res

def verify(pro, body_fn, body_lines, niter):
    import re
    q = {'vm': [], 'lg': []}
    done = {'vm': 0, 'lg': 0}
    def apply_text(t):
        if t.startswith('s_waitcnt'):
            m = re.search(r'vmcnt\((\d+)\)', t)
            if m: done['vm'] = max(done['vm'], len(q['vm']) - int(m.group(1)))
            m = re.search(r'lgkmcnt\((\d+)\)', t)
            if m: done['lg'] = max(done['lg'], len(q['lg']) - int(m.group(1)))
    for x in pro.items:
        if x[0] == 'i': apply_text(x[1])
        elif x[0] in ('vm', 'lg'): q[x[0]].append(x[1])
        elif x[0] in ('wvm', 'wlg'): raise Exception('no symbolic waits in prologue')
    maxout = 0
    for it in range(niter):
        st = body_fn(it)
        assert len(st.items) == len(body_lines)
        for x, ln in zip(st.items, body_lines):
            if x[0] == 'i': apply_text(x[1])
            elif x[0] in ('vm', 'lg'):
                q[x[0]].append(x[1])
                if x[0] == 'vm': maxout = max(maxout, len(q['vm']) - done['vm'])
            elif x[0] in ('wvm', 'wlg'):
                apply_text(ln)
                k = x[0][1:]
                tags = x[1] if isinstance(x[1], list) else [x[1]]
                for tg in tags:
                    assert tg in q[k], ('missing op', tg, it)
                    idx = max(i for i, t in enumerate(q[k]) if t == tg)
                    assert idx < done[k], ('wait not satisfied', it, tg, idx, done[k], ln)
    return maxout

def lines_of(st):
    out = []
    for x in st.items:
        if x[0] == 'i': out.append(x[1])
        elif x[0] == 'label': out.append(x[1] + ':')
        elif x[0] in ('vm', 'lg'): out.append(x[2])
        else: raise Exception('symbolic wait in plain stream')
    return out

def kernel_text(name, lines, nvgpr, accum_offset, nsgpr=96):
    t = ['.text', '.globl %s' % name, '.p2align 8', '.type %s,@function' % name, name + ':']
    for l in lines:
        t.append(l if l.endswith(':') else '    ' + l)
    t += ['.section .rodata,"a"', '.p2align 6', '.amdhsa_kernel %s' % name,
          '  .amdhsa_next_free_vgpr %d' % nvgpr, '  .amdhsa_next_free_sgpr %d' % nsgpr,
          '  .amdhsa_accum_offset %d' % accum_offset, '  .amdhsa_group_segment_fixed_size 0',
          '  .amdhsa_kernarg_size 80', '  .amdhsa_user_sgpr_count 2',
          '  .amdhsa_user_sgpr_kernarg_segment_ptr 1', '  .amdhsa_system_sgpr_workgroup_id_x 1',
          '  .amdhsa_float_denorm_mode_32 3',
          '.end_amdhsa_kernel']
    return '\n'.join(t) + '\n'

HEADER = """; Kernarg layout for this problem (80 bytes, ptrs only, base s[0:1]):
"""

def file_text(launches, kernels):
    t = HEADER
    for (k, g, b, lds) in launches:
        t += '; @launch kernel=%s grid=(%d,1,1) block=(%d,1,1) lds=%d\n' % (k, g, b, lds)
    t += '.amdgcn_target "amdgcn-amd-amdhsa--gfx950"\n'
    for k in kernels:
        t += k
    return t

def touch(arg_off, nbytes, line0_expr_sregs, sbase, vtmp, vdst, lane='v0'):
    return f"""
    s_mov_b32 s{sbase+2}, {nbytes}
    s_mov_b32 s{sbase+3}, 0x20000
    v_add_u32 v{vtmp}, {line0_expr_sregs}, {lane}
    v_lshlrev_b32 v{vtmp}, 7, v{vtmp}
    buffer_load_dword v{vdst}, v{vtmp}, s[{sbase}:{sbase+3}], 0 offen
    """
```

```python
from asmlib import *
from k3 import WS_XN, WS_O, WS_H, WS_HN, WS_HH, WS_STAMP, stamp_code, stamp_store

def gen_k1(name='k1_kernel', NS=4, DT=2, stamps=False, kidx=1, pf=False):
    SLOT = 24576
    HALO = NS * SLOT
    LDS = HALO + 32768 + 12288
    NST = 16
    A0 = 32
    acc = lambda sec, p, tb: A0 + ((sec * 4 + p) * 2 + tb) * 4
    R4 = lambda r: f'v[{r}:{r+3}]'
    HK, HV = 128, 132
    WF0, TF0 = 136, 168
    HF0 = TF0 + DT * 16
    NV = HF0 + 8
    WF = lambda n, lo=0, hi=3: f'v[{WF0+4*n+lo}:{WF0+4*n+hi}]'
    TF = lambda s, ks, tb: R4(TF0 + (((s % DT) * 2 + ks) * 2 + tb) * 4)
    HF = lambda ks: R4(HF0 + 4 * ks)
    P = Stream()
    P.i(f"""
    s_cmp_ge_u32 s2, 256
    s_cbranch_scc1 {name}_done
    s_load_dwordx2 s[4:5], s[0:1], 8
    s_load_dwordx2 s[8:9], s[0:1], 72
    s_load_dwordx4 s[92:95], s[0:1], 32
    """)
    if stamps: P.i('s_memrealtime s[78:79]')
    P.i(stamp_code(0, stamps))
    P.i(f"""
    v_lshrrev_b32 v1, 6, v0
    v_and_b32 v0, 63, v0
    v_readfirstlane_b32 s10, v1
    s_and_b32 s11, s2, 7
    s_lshr_b32 s28, s2, 3
    s_and_b32 s29, s11, 1
    s_lshl_b32 s29, s29, 3
    s_and_b32 s30, s28, 7
    s_add_u32 s29, s29, s30          ; mt (0..15)
    s_lshr_b32 s30, s11, 1
    s_lshl_b32 s30, s30, 2
    s_lshr_b32 s31, s28, 3
    s_add_u32 s30, s30, s31          ; nt (0..15)
    v_lshlrev_b32 v10, 4, v0         ; lane*16
    v_lshrrev_b32 v11, 5, v0
    v_lshlrev_b32 v11, 3, v11
    v_bfe_u32 v12, v0, 3, 2
    v_add_u32 v11, v11, v12
    s_lshl_b32 s32, s10, 4
    v_add_u32 v11, s32, v11
    v_mul_u32_u24 v11, 6144, v11
    v_bfe_u32 v12, v0, 4, 2
    v_lshlrev_b32 v12, 1, v12
    v_and_b32 v14, 7, v0
    v_xor_b32 v12, v12, v14
    v_lshl_add_u32 v2, v12, 4, v11
    v_add_u32 v3, {4*6144-1024}, v2
    s_mul_i32 s38, s10, 6144
    s_lshl_b32 s36, s29, 3
    s_lshl_b32 s37, s10, 1
    s_add_u32 s36, s36, s37
    s_lshl_b32 s37, s36, 15
    s_lshl_b32 s35, s30, 7
    s_lshl_b32 s33, s29, 18          ; mt*8*32768
    s_sub_u32 s34, s33, 0x8000
    s_cmp_eq_u32 s29, 0
    s_cselect_b32 s34, 0, s34
    s_cselect_b32 s26, 0, 0x8000
    s_lshl_b32 s47, s10, 10          ; w*1024
    s_waitcnt lgkmcnt(0)
    s_add_u32 s12, s4, s35
    s_addc_u32 s13, s5, 0
    s_sub_u32 s14, {1024*6144}, s35
    s_mov_b32 s15, 0x20000
    s_add_u32 s16, s8, s37
    s_addc_u32 s17, s9, 0
    s_mov_b32 s18, 0x8000
    s_mov_b32 s19, 0x20000
    s_add_u32 s20, s16, 0x8000
    s_addc_u32 s21, s17, 0
    s_mov_b32 s22, 0x8000
    s_mov_b32 s23, 0x20000
    s_add_u32 s24, s8, s34
    s_addc_u32 s25, s9, 0
    s_mov_b32 s27, 0x20000
    """)
    assert WS_XN == 0
    def dma(st, stage, n):
        st.vm(('W', stage, n), f'buffer_load_dwordx4 v{2+(n&1)}, s[12:15], {"s40" if n < 4 else "s45"} offen offset:{(n%4)*1024} lds')
    def hdma(st, m):
        st.vm(('H', 2 * m), 'buffer_load_dwordx4 v10, s[24:27], s46 offen lds')
    def tload(st, stage, ks, tb, imm):
        b = 16 + 4 * tb
        st.vm(('T', stage, ks, tb), f'buffer_load_dwordx4 {TF(stage, ks, tb)}, v10, s[{b}:{b+3}], s42 offen offset:{imm}')
    def wread(st, stage, ks, n, q):
        st.lg(('R', stage, ks, n, q), f'ds_read_b64_tr_b16 {WF((ks*12+n)%8, 2*q, 2*q+1)}, v{16+(n&3)} offset:{ks*12288+(n>>2)*2048+q*1024}')
    def hread(st, stage, ks, imm):
        st.lg(('HR', stage, ks), f'ds_read_b128 {HF(ks)}, v24 offset:{imm}')
    PRO_SLOT = len(P.items)
    P.i(f"""
    v_lshrrev_b32 v11, 5, v0
    v_mul_u32_u24 v11, 6144, v11
    v_bfe_u32 v12, v0, 2, 3
    v_lshl_add_u32 v11, v12, 7, v11
    v_and_b32 v12, 3, v0
    v_lshl_add_u32 v11, v12, 3, v11
    v_bfe_u32 v12, v0, 3, 2
    v_xor_b32 v12, s10, v12
    v_add_u32 v24, {HALO}, v10
    """)
    for j in range(4):
        P.i(f'v_xor_b32 v14, {j}, v12\nv_lshl_add_u32 v{20+j}, v14, 5, v11\nv_mov_b32 v{16+j}, v{20+j}')
    for r in range(104): P.i(f'v_mov_b32 v{A0+r}, 0')
    P.i('PROWAIT\ns_barrier')
    P.i(stamp_code(1, stamps))
    LAG = 6
    for n in range(2):
        for q in range(2): wread(P, 0, 0, n, q)
    hread(P, 0, 0, 0)
    for n in range(2, LAG):
        for q in range(2): wread(P, 0, 0, n, q)

    def body(it):
        B = Stream()
        B.label(f'{name}_loop')
        for sl in range(DT):
            s = it * DT + sl
            for ks in range(2):
                fill = [[] for _ in range(24)]
                for n in range(12):
                    m = ks * 12 + n + LAG
                    rs, rks, rn = s + m // 24, (m % 24) // 12, m % 12
                    for q in range(2):
                        fill[2*n+q].append(lambda rs=rs, rks=rks, rn=rn, q=q: wread(B, rs, rks, rn, q))
                ns, nks = (s, 1) if ks == 0 else (s + 1, 0)
                fill[15].append(lambda: hread(B, ns, nks, (sl * 2 + ks + 1) * 1024))
                ts, tks = (s + DT - 1, 1) if ks == 0 else (s + DT, 0)
                fill[1].append(lambda: tload(B, ts, tks, 0, ks * 1024))
                fill[9].append(lambda: tload(B, ts, tks, 1, ks * 1024))
                if ks == 0:
                    ds = s + NS - 2
                    fill[5].append(lambda: dma(B, ds, 2))
                    fill[13].append(lambda: dma(B, ds, 3))
                    fill[17].append(lambda: B.i('s_add_u32 m0, m0, 4096'))
                    fill[19].append(lambda: dma(B, ds, 4))
                    fill[23].append(lambda: B.i(f"""
                      s_add_u32 s43, s43, {SLOT}
                      s_cmp_eq_u32 s43, {NS*SLOT}
                      s_cselect_b32 s43, 0, s43"""))
                else:
                    fill[3].append(lambda: dma(B, s + NS - 2, 5))
                    if (s + NS - 2) % 2 == 0:
                        fill[5].append(lambda: B.i(f's_add_u32 m0, s46, {HALO}'))
                        fill[6].append(lambda: hdma(B, (s + NS - 2) // 2))
                        fill[7].append(lambda: B.i('s_add_u32 s46, s46, 4096'))
                    fill[8].append(lambda: B.i(f"""
                      s_add_u32 s41, s41, {SLOT}
                      s_cmp_eq_u32 s41, {NS*SLOT}
                      s_cselect_b32 s41, 0, s41"""))
                    fill[10].append(lambda: B.i(f's_add_u32 s40, s40, {64*6144}\ns_add_u32 s45, s45, {64*6144}'))
                    fill[11].append(lambda: B.i('s_add_u32 m0, s41, s38'))
                    fill[13].append(lambda: dma(B, s + NS - 1, 0))
                    fill[21].append(lambda: dma(B, s + NS - 1, 1))
                    fill[23].append(lambda: B.i('s_add_u32 s42, s42, 2048'))
                B.wvm([('T', s, ks, tb) for tb in range(2)])
                for n in range(12):
                    sec, p = n >> 2, n & 3
                    if ks == 1 and n == 6:
                        B.wvm([('W', s + 1, i) for i in range(6)] + ([('H', s + 1)] if (s + 1) % 2 == 0 else []))
                        B.i('s_barrier')
                        for jj in range(4): B.i(f'v_add_u32 v{16+jj}, s43, v{20+jj}')
                    B.wlg([('R', s, ks, n, 1)] + ([('HR', s, ks)] if n == 4 else []))
                    w = WF((ks * 12 + n) % 8)
                    for tb in range(2):
                        a = R4(acc(sec, p, tb))
                        if sec < 2: B.i(f'v_mfma_f32_16x16x32_bf16 {a}, {w}, {TF(s, ks, tb)}, {a}')
                        else: B.i(f'v_mfma_f32_16x16x32_bf16 {a}, {TF(s, ks, tb)}, {w}, {a}')
                        for f in fill[2*n+tb]: f()
                    if n == 4: B.i(f'v_mfma_f32_16x16x32_bf16 {R4(HK)}, {w}, {HF(ks)}, {R4(HK)}')
                    if n == 8: B.i(f'v_mfma_f32_16x16x32_bf16 {R4(HV)}, {HF(ks)}, {w}, {R4(HV)}')
        B.i(f'v_add_u32 v24, {2048*DT}, v24')
        B.i(f's_add_u32 s44, s44, 1\ns_cmp_lt_u32 s44, {NST//DT}\ns_cbranch_scc1 {name}_loop')
        return B
    L = Stream()
    nh = 0
    for it in range(-3, 0):
        for x in body(it).items:
            if x[0] == 'vm' and x[1][1] >= 0:
                tg = x[1]
                if tg[0] == 'W':
                    L.i(f's_add_u32 m0, s38, {tg[1]*SLOT + (4096 if tg[2] >= 4 else 0)}\ns_mov_b32 s40, {tg[1]*64*6144}\ns_mov_b32 s45, {tg[1]*64*6144+4096}')
                    dma(L, tg[1], tg[2])
                elif tg[0] == 'H':
                    L.i(f's_add_u32 s46, s47, {tg[1]*2048}\ns_add_u32 m0, s46, {HALO}\ns_nop 0')
                    hdma(L, tg[1] // 2); nh += 1
                else:
                    L.i(f's_mov_b32 s42, {tg[1]*2048}')
                    tload(L, tg[1], tg[2], tg[3], tg[2] * 1024)
    L.i(f's_add_u32 s46, s47, {nh*4096}')
    L.i(f's_mov_b32 s42, {(DT-1)*2048+1024}\ns_mov_b32 s41, {(NS-2)*SLOT}\ns_mov_b32 s43, 0\ns_mov_b32 s44, 0')
    vms = [x[1] for x in L.items if x[0] == 'vm']
    assert vms[-1][0] == 'W'
    nafter = len(vms) - 1 - max(vms.index(('W', 0, 5)), vms.index(('H', 0)))
    P.items[PRO_SLOT:PRO_SLOT] = L.items
    P.items = [('i', f's_waitcnt vmcnt({nafter})') if x == ('i', 'PROWAIT') else x for x in P.items]
    bl = resolve_loop(body)
    mo = verify(P, body, bl, NST // DT)

    E = Stream()
    E.i(stamp_code(2, stamps))
    QF = lambda hd, tb: 136 + (hd * 2 + tb) * 4
    KF = lambda hd, kb: 152 + (hd * 3 + kb) * 4
    VF = lambda p: 176 + p * 6
    ONES = 4
    M0r, BA, BB = 26, 30, 31
    E.i(f"""
    v_and_b32 v11, 15, v0            ; t
    v_lshrrev_b32 v12, 4, v0         ; g
    v_and_b32 v13, 1, v0             ; par
    v_cmp_eq_u32 s[50:51], 1, v13
    v_and_b32 v14, 14, v11
    v_lshlrev_b32 v15, 2, v12
    v_sub_u32 v14, v14, v15          ; d_a = t - par - 4g
    v_cmp_le_i32 s[52:53], 0, v14
    v_cmp_le_i32 s[54:55], 2, v14
    v_mov_b32 v15, 0xffff
    v_mov_b32 v14, 0xffff0000
    v_cndmask_b32 v15, v15, v14, s[50:51]
    v_cndmask_b32 v{M0r}, v15, 0, s[52:53]
    v_cndmask_b32 v{M0r+1}, v15, 0, s[54:55]
    v_cndmask_b32 v{M0r+2}, 0, v15, s[52:53]
    v_cndmask_b32 v{M0r+3}, 0, v15, s[54:55]
    s_cmp_eq_u32 s36, 0
    s_cselect_b32 s56, 0xf149f2ca, 0
    v_mov_b32 v14, s56
    v_cndmask_b32 v{BA}, v14, 0, s[52:53]
    v_cndmask_b32 v{BB}, v14, 0, s[54:55]
    v_mov_b32 v4, 0x3f803f80
    v_mov_b32 v5, 0x3f803f80
    v_mov_b32 v6, 0x3f803f80
    v_mov_b32 v7, 0x3f803f80
    v_lshlrev_b32 v13, 3, v0
    s_lshl_b32 s57, s10, 9
    v_add_u32 v20, s57, v13
    s_lshl_b32 s57, s10, 12
    v_add_u32 v13, s57, v13
    """)
    for p in range(4):
        E.i(f's_xor_b32 s{84+p}, s10, {p}\ns_lshl_b32 s{84+p}, s{84+p}, 9\nv_add_u32 v{16+p}, s{84+p}, v13')
    E.i(f"""
    v_and_b32 v14, 1, v12
    v_add_u32 v14, s36, v14
    v_lshlrev_b32 v21, 15, v14
    v_lshrrev_b32 v14, 1, v12
    v_lshl_add_u32 v21, v14, 8, v21
    v_lshl_add_u32 v21, v11, 4, v21
    s_lshl_b32 s57, s30, 11
    v_add_u32 v21, s57, v21
    s_add_u32 s88, s8, 0x{WS_O:x}
    s_addc_u32 s89, s9, 0
    s_mov_b32 s90, 0x400000
    s_mov_b32 s91, 0x20000
    s_mov_b32 s48, 0x3e8293ee
    s_waitcnt vmcnt(0) lgkmcnt(0)
    """)
    if pf:
        E.i('''
        s_cmp_ge_u32 s10, 2
        s_cselect_b32 s92, s94, s92
        s_cselect_b32 s93, s95, s93
        s_and_b32 s57, s10, 1
        s_lshl_b32 s57, s57, 8
        s_add_u32 s57, s57, s2
        s_lshl_b32 s57, s57, 6''')
        E.i(touch(0, 1024*7168, 's57', 92, 9, 9))
    E.i('s_barrier')
    pk = lambda d, a: f'v_cvt_pk_bf16_f32 v{d}, v{a}, v{a+1}\nv_cvt_pk_bf16_f32 v{d+1}, v{a+2}, v{a+3}'
    for p in range(4):
        E.i(pk(KF(p >> 1, 2) + 2 * (p & 1), acc(1, p, 1)))
        E.i(pk(VF(p) + 4, acc(2, p, 1)))
    E.i(pk(HK, HK)); E.i(pk(HV, HV))
    for p in range(4):
        r = KF(p >> 1, 2) + 2 * (p & 1)
        E.i(f'ds_write_b64 v{16+p}, v[{r}:{r+1}] offset:4096')
        E.i(f'ds_write_b64 v{16+p}, v[{VF(p)+4}:{VF(p)+5}] offset:{4096+2048}')
    E.i(f'ds_write_b64 v20, v[{HK}:{HK+1}]\nds_write_b64 v20, v[{HV}:{HV+1}] offset:2048')
    for p in range(4):
        E.i(pk(KF(p >> 1, 1) + 2 * (p & 1), acc(1, p, 0)))
        E.i(pk(VF(p) + 2, acc(2, p, 0)))
        for tb in range(2): E.i(pk(QF(p >> 1, tb) + 2 * (p & 1), acc(0, p, tb)))
    E.i('s_waitcnt lgkmcnt(0)\ns_barrier')
    for p in range(4):
        r = KF(p >> 1, 0) + 2 * (p & 1)
        E.i(f'ds_read_b64 v[{r}:{r+1}], v{16+p}')
        E.i(f'ds_read_b64 v[{VF(p)}:{VF(p)+1}], v{16+p} offset:2048')
    OUT = lambda p, tb: 64 + (p * 2 + tb) * 4
    LS = lambda hd, tb: 96 + (hd * 2 + tb) * 4
    for tb in (1, 0):
        if tb == 0: E.i('s_waitcnt lgkmcnt(0)')
        for hd in range(2):
            b = 32 + 16 * hd
            E.i(f'v_mfma_f32_16x16x32_bf16 {R4(b)}, {R4(KF(hd, tb))}, {R4(QF(hd, tb))}, 0')
            E.i(f'v_mfma_f32_16x16x32_bf16 {R4(b+4)}, {R4(KF(hd, tb+1))}, {R4(QF(hd, tb))}, 0')
        E.i('s_nop 7')
        for hd in range(2):
            b = 32 + 16 * hd
            E.i(f"""
            v_cndmask_b32 v{b}, v{b}, v{b+1}, s[50:51]
            v_cndmask_b32 v{b+2}, v{b+2}, v{b+3}, s[50:51]
            v_cndmask_b32 v{b+4}, v{b+4}, v{b+5}, s[50:51]
            v_cndmask_b32 v{b+6}, v{b+6}, v{b+7}, s[50:51]
            v_cndmask_b32 v{b}, v{b}, v{b+4}, s[52:53]
            v_cndmask_b32 v{b+2}, v{b+2}, v{b+6}, s[54:55]
            """)
            if tb == 0: E.i(f'v_add_f32 v{b}, v{b}, v{BA}\nv_add_f32 v{b+2}, v{b+2}, v{BB}')
            E.i(f'v_max_f32 v{b+12}, v{b}, v{b+2}\nv_mov_b32 v{b+13}, v{b+12}')
        E.i('s_nop 0')
        for hd in range(2):
            b = 32 + 16 * hd
            E.i(f'v_permlane16_swap_b32 v{b+12}, v{b+13}')
        for hd in range(2):
            b = 32 + 16 * hd
            E.i(f'v_max_f32 v{b+12}, v{b+12}, v{b+13}\nv_mov_b32 v{b+13}, v{b+12}')
        E.i('s_nop 0')
        for hd in range(2):
            b = 32 + 16 * hd
            E.i(f'v_permlane32_swap_b32 v{b+12}, v{b+13}')
        for hd in range(2):
            b = 32 + 16 * hd
            E.i(f"""
            v_max_f32 v{b+12}, v{b+12}, v{b+13}
            v_sub_f32 v{b}, v{b}, v{b+12}
            v_sub_f32 v{b+2}, v{b+2}, v{b+12}
            v_mul_f32 v{b}, s48, v{b}
            v_mul_f32 v{b+2}, s48, v{b+2}
            v_exp_f32 v{b}, v{b}
            v_exp_f32 v{b+2}, v{b+2}
            """)
        for hd in range(2):
            b = 32 + 16 * hd
            E.i(f"""
            v_cvt_pk_bf16_f32 v{b}, v{b}, v{b}
            v_cvt_pk_bf16_f32 v{b+2}, v{b+2}, v{b+2}
            v_and_b32 v{b+8}, v{b}, v{M0r}
            v_and_b32 v{b+9}, v{b+2}, v{M0r+1}
            v_and_b32 v{b+10}, v{b}, v{M0r+2}
            v_and_b32 v{b+11}, v{b+2}, v{M0r+3}
            """)
        E.i('s_nop 1')
        for hd in range(2):
            b = 32 + 16 * hd
            E.i(f'v_mfma_f32_16x16x32_bf16 {R4(LS(hd, tb))}, {R4(ONES)}, {R4(b+8)}, 0')
            for hf in range(2):
                p = hd * 2 + hf
                E.i(f'v_mfma_f32_16x16x32_bf16 {R4(OUT(p, tb))}, {R4(VF(p)+2*tb)}, {R4(b+8)}, 0')
    E.i('s_nop 7')
    for hd in range(2):
        for tb in range(2): E.i(f'v_rcp_f32 v{LS(hd, tb)}, v{LS(hd, tb)}')
    E.i('s_nop 0')
    for p in range(4):
        for tb in range(2):
            for r in range(4): E.i(f'v_mul_f32 v{OUT(p, tb)+r}, v{OUT(p, tb)+r}, v{LS(p >> 1, tb)}')
        o = OUT(p, 0)
        d = 112 + 4 * p
        E.i(pk(d, o)); E.i(pk(d + 2, o + 4))
        E.i(f's_nop 1\nv_permlane16_swap_b32 v{d}, v{d+2}\nv_permlane16_swap_b32 v{d+1}, v{d+3}')
        E.i(f'buffer_store_dwordx4 {R4(d)}, v21, s[88:91], s{84+p} offen')
    E.i(stamp_code(3, stamps))
    if stamps:
        E.i('s_waitcnt vmcnt(0)')
        E.i(stamp_code(4, stamps))
        E.i(stamp_store(5, stamps, kidx))
    E.label(f'{name}_done')
    E.i('s_endpgm')
    lines = lines_of(P) + bl + lines_of(E)
    NV = max(NV, 200)
    return kernel_text(name, lines, NV, (NV + 3) // 4 * 4), (name, 256, 256, LDS), mo
```

```python
from asmlib import *
from k3 import WS_XN, WS_O, WS_H, WS_HN, WS_HH, WS_STAMP, stamp_code, stamp_store

def gen_k3b(name='k3_kernel', NS=4, stamps=False, do_mfma=True, do_dma=True, do_t=True, do_rd=True, kidx=3, accv=True, stagger=False, pf=False):
    SLOT = 28672
    UPOFF = 14336
    if accv:
        ACC = lambda n: f'v[{32+4*n}:{35+4*n}]'
        WF = lambda n, lo=0, hi=3: f'a[{4*n+lo}:{4*n+hi}]'
        TF = lambda n: f'a[{32+4*n}:{35+4*n}]'
    else:
        ACC = lambda n: f'a[{4*n}:{3+4*n}]'
        WF = lambda n, lo=0, hi=3: f'v[{32+4*n+lo}:{32+4*n+hi}]'
        TF = lambda n: f'v[{64+4*n}:{67+4*n}]'
    for c in range(896): assert (c * 4682) >> 16 == c // 14
    P = Stream()
    P.i(f"""
    s_cmp_ge_u32 s2, 256
    s_cbranch_scc1 {name}_done
    s_load_dwordx4 s[4:7], s[0:1], 32
    s_load_dwordx2 s[8:9], s[0:1], 72
    s_load_dwordx2 s[92:93], s[0:1], 48
    """)
    if stamps: P.i('s_memrealtime s[78:79]')
    P.i(stamp_code(0, stamps))
    P.i("""
    v_lshrrev_b32 v1, 6, v0
    v_and_b32 v0, 63, v0
    v_readfirstlane_b32 s10, v1
    s_and_b32 s11, s2, 7
    s_lshr_b32 s28, s2, 3
    s_and_b32 s29, s11, 1
    s_lshl_b32 s29, s29, 2
    s_and_b32 s30, s28, 3
    s_add_u32 s29, s29, s30          ; mt
    s_lshr_b32 s30, s11, 1
    s_lshl_b32 s30, s30, 3
    s_lshr_b32 s31, s28, 2
    s_add_u32 s30, s30, s31          ; nt
    s_and_b32 s31, s10, 1            ; half
    s_mul_i32 s32, s31, 448          ; half*7*64
    v_add_u32 v1, s32, v0
    s_movk_i32 s33, 4682
    s_movk_i32 s34, 7168
    """)
    for i in range(7):
        P.i(f"""
        v_add_u32 v11, {64*i}, v1
        v_mul_lo_u32 v12, v11, s33
        v_lshrrev_b32 v12, 16, v12
        v_mul_u32_u24 v14, 14, v12
        v_sub_u32 v11, v11, v14
        v_and_b32 v14, 0x33, v12
        v_and_b32 v15, 4, v12
        v_lshl_add_u32 v14, v15, 1, v14
        v_and_b32 v15, 8, v12
        v_lshrrev_b32 v15, 1, v15
        v_add_u32 v14, v14, v15
        v_mul_lo_u32 v12, v14, s34
        v_lshl_add_u32 v{2+i}, v11, 4, v12
        v_subrev_u32 v{2+i}, {(i%4)*1024}, v{2+i}
        """)
    P.i(f"""
    v_lshlrev_b32 v10, 4, v0         ; lane*16
    s_waitcnt lgkmcnt(0)
    s_cmp_ge_u32 s10, 2
    s_cselect_b32 s12, s6, s4
    s_cselect_b32 s13, s7, s5
    s_mul_i32 s35, s30, 224
    s_add_u32 s12, s12, s35
    s_addc_u32 s13, s13, 0
    s_sub_u32 s14, {1024*7168}, s35
    s_mov_b32 s15, 0x20000
    s_lshl_b32 s36, s29, 4
    s_lshl_b32 s37, s10, 2
    s_add_u32 s36, s36, s37
    s_lshl_b32 s37, s36, 15
    s_add_u32 s37, s37, 0x{WS_HN:x}
    s_add_u32 s16, s8, s37
    s_addc_u32 s17, s9, 0
    s_mov_b32 s18, 0x8000
    s_mov_b32 s19, 0x20000
    """)
    for tb in range(1, 4):
        b = [16, 20, 84, 88][tb]
        P.i(f"""
        s_add_u32 s{b}, s16, {0x8000*tb}
        s_addc_u32 s{b+1}, s17, 0
        s_mov_b32 s{b+2}, 0x8000
        s_mov_b32 s{b+3}, 0x20000""")
    P.i(f"""
    s_lshr_b32 s38, s10, 1
    s_mul_i32 s38, s38, {UPOFF}
    s_mul_i32 s39, s31, 7168
    s_add_u32 s38, s38, s39
    """)
    def dma(st, stage, i):
        st.vm(('W', stage, i), f'buffer_load_dwordx4 v{2+i}, s[12:15], s40 offen offset:{(i%4)*1024} lds' if do_dma else 's_nop 0')
    def tload(st, stage, ks, tb, imm):
        b = [16, 20, 84, 88][tb]
        st.vm(('T', stage, ks, tb), f'buffer_load_dwordx4 {TF((stage&1)*8+ks*4+tb)}, v10, s[{b}:{b+3}], s42 offen offset:{imm}' if do_t else 's_nop 0')
    def wread(st, stage, ks, j, q):
        st.lg(('R', stage, ks, j, q), f'ds_read_b64_tr_b16 {WF(j%7, 2*q, 2*q+1)}, v13 offset:{(32*ks+8*q)*224+32*(j>>1)+(j&1)*UPOFF}' if do_rd else 's_nop 0')
    PRO_SLOT = len(P.items)
    P.i(f"""
    v_lshrrev_b32 v11, 5, v0
    v_lshlrev_b32 v11, 4, v11
    v_bfe_u32 v12, v0, 2, 3
    v_add_u32 v11, v11, v12
    v_mul_u32_u24 v9, 224, v11
    v_and_b32 v11, 3, v0
    v_lshl_add_u32 v9, v11, 3, v9
    v_mov_b32 v13, v9
    """)
    for r in range(224): P.i(f'v_mov_b32 v{32+r}, 0' if accv else f'v_accvgpr_write_b32 a{r}, 0')
    P.i('PROWAIT\ns_barrier')
    P.i(stamp_code(1, stamps))
    if stamps: P.i('s_memtime s[72:73]\ns_memrealtime s[74:75]\nv_mov_b32 v16, 0\nv_mov_b32 v17, 0')
    for j in range(6):
        for q in range(2): wread(P, 0, 0, j, q)

    def body(it):
        B = Stream()
        B.label(f'{name}_loop')
        for sl in range(2):
            s = it * 2 + sl
            for ks in range(2):
                fill = [[] for _ in range(56)]
                ns, nks = (s, 1) if ks == 0 else (s + 1, 0)
                for j in range(14):
                    jj = j + 6
                    for q in range(2):
                        if jj < 14: fill[4*j+1+q].append(lambda jj=jj, q=q: wread(B, s, ks, jj, q))
                        else: fill[4*j+1+q].append(lambda jj=jj, q=q: wread(B, ns, nks, jj - 14, q))
                ts, tks = (s + 1, 1) if ks == 0 else (s + 2, 0)
                for tb in range(4):
                    fill[3 + 12 * tb].append(lambda tb=tb: tload(B, ts, tks, tb, ks * 1024))
                if ks == 0:
                    ds = s + NS - 2
                    for n, p in enumerate([2, 3, 4, 5]):
                        fill[7 + 12 * n].append(lambda p=p: dma(B, ds, p))
                    fill[23].append(lambda: B.i('s_add_u32 m0, m0, 4096'))
                else:
                    fill[7].append(lambda: dma(B, s + NS - 2, 6))
                    fill[11].append(lambda: B.i(f"""
                      s_add_u32 s43, s43, {SLOT}
                      s_cmp_eq_u32 s43, {NS*SLOT}
                      s_cselect_b32 s43, 0, s43"""))
                    fill[19].append(lambda: B.i(f"""
                      s_add_u32 s41, s41, {SLOT}
                      s_cmp_eq_u32 s41, {NS*SLOT}
                      s_cselect_b32 s41, 0, s41"""))
                    fill[23].append(lambda: B.i(f's_add_u32 s40, s40, {64*7168}\ns_add_u32 m0, s41, s38'))
                    fill[35].append(lambda: dma(B, s + NS - 1, 0))
                    fill[47].append(lambda: dma(B, s + NS - 1, 1))
                    fill[55].append(lambda: B.i('s_add_u32 s42, s42, 2048'))
                B.wvm([('T', s, ks, tb) for tb in range(4)])
                for j in range(14):
                    if ks == 1 and j == 8:
                        B.wvm([('W', s + 1, i) for i in range(7)])
                        B.i('s_barrier')
                        B.i('v_add_u32 v13, s43, v9')
                    B.wlg(('R', s, ks, j, 1))
                    for tb in range(4):
                        a = ACC(j * 4 + tb)
                        B.i(f'v_mfma_f32_16x16x32_bf16 {a}, {WF(j%7)}, {TF((s&1)*8+ks*4+tb)}, {a}' if do_mfma else 's_nop 0')
                        for f in fill[4*j+tb]: f()
        if stamps:
            B.i('v_cmp_eq_u32 vcc, s44, v0\nv_mov_b32 v18, s72\nv_mov_b32 v19, s74\nv_cndmask_b32 v16, v16, v18, vcc\nv_cndmask_b32 v17, v17, v19, vcc\ns_memtime s[72:73]\ns_memrealtime s[74:75]')
        B.i(f's_add_u32 s44, s44, 1\ns_cmp_lt_u32 s44, 8\ns_cbranch_scc1 {name}_loop')
        return B
    L = Stream()
    for it in range(-3, 0):
        for x in body(it).items:
            if x[0] == 'vm' and x[1][1] >= 0:
                tg = x[1]
                if tg[0] == 'W':
                    L.i(f's_add_u32 m0, s38, {tg[1]*SLOT + (4096 if tg[2] >= 4 else 0)}\ns_mov_b32 s40, {tg[1]*64*7168}')
                    dma(L, tg[1], tg[2])
                else:
                    L.i(f's_mov_b32 s42, {tg[1]*2048}')
                    tload(L, tg[1], tg[2], tg[3], tg[2] * 1024)
    L.i(f's_mov_b32 s42, 3072\ns_mov_b32 s41, {(NS-2)*SLOT}\ns_mov_b32 s43, 0\ns_mov_b32 s44, 0')
    vms = [x[1] for x in L.items if x[0] == 'vm']
    nafter = len(vms) - 1 - vms.index(('W', 0, 6))
    P.items[PRO_SLOT:PRO_SLOT] = L.items
    P.items = [('i', f's_waitcnt vmcnt({nafter})') if x == ('i', 'PROWAIT') else x for x in P.items]
    bl = resolve_loop(body)
    mo = verify(P, body, bl, 8)
    E = Stream()
    E.i(stamp_code(2, stamps))
    if pf:
        E.i('''
        s_lshl_b32 s57, s2, 2
        s_add_u32 s57, s57, s10
        s_mul_i32 s57, s57, 56
        v_min_u32 v9, 55, v0''')
        E.i(touch(0, 3584*2048, 's57', 92, 9, 9, lane='v9'))
    E.i(f"""
    s_mul_i32 s37, s36, {448*256}
    s_mul_i32 s39, s30, {14*256}
    s_add_u32 s37, s37, s39
    s_add_u32 s37, s37, 0x{WS_HH:x}
    s_add_u32 s24, s8, s37
    s_addc_u32 s25, s9, 0
    s_mov_b32 s26, {4*448*256}
    s_mov_b32 s27, 0x20000
    s_mov_b32 s45, 0xbfb8aa3b
    s_mov_b32 s47, {2*448*256}
    v_bfe_u32 v11, v0, 4, 1
    s_mov_b32 s46, {448*256}
    v_mul_lo_u32 v11, v11, s46
    v_lshrrev_b32 v12, 5, v0
    v_lshl_add_u32 v11, v12, 8, v11
    v_and_b32 v12, 15, v0
    v_lshl_add_u32 v11, v12, 4, v11
    s_nop 7
    """)
    for jb in range(7):
        for pr in range(2):
            if accv:
                g0 = 32 + 4 * (8 * jb + 2 * pr); u0 = g0 + 16
            else:
                g0 = 16 + 0; u0 = 24
                ag = 4 * (8 * jb + 2 * pr)
                g0 = 128 + ((jb * 2 + pr) % 4) * 16; u0 = g0 + 8
                for r in range(8): E.i(f'v_accvgpr_read_b32 v{g0+r}, a{ag+r}')
                for r in range(8): E.i(f'v_accvgpr_read_b32 v{u0+r}, a{ag+16+r}')
            for r in range(8): E.i(f'v_mul_f32 v{g0+r}, s45, v{g0+r}')
            for r in range(8): E.i(f'v_exp_f32 v{g0+r}, v{g0+r}')
            for r in range(8): E.i(f'v_add_f32 v{g0+r}, 1.0, v{g0+r}')
            for r in range(8): E.i(f'v_rcp_f32 v{g0+r}, v{g0+r}')
            for r in range(8): E.i(f'v_mul_f32 v{g0+r}, v{g0+r}, v{u0+r}')
            for r in range(4): E.i(f'v_cvt_pk_bf16_f32 v{u0+r}, v{g0+2*r}, v{g0+2*r+1}')
            E.i('s_nop 1')
            E.i(f'v_permlane16_swap_b32 v{u0}, v{u0+2}')
            E.i(f'v_permlane16_swap_b32 v{u0+1}, v{u0+3}')
            E.i(f'buffer_store_dwordx4 v[{u0}:{u0+3}], v11, s[24:27], {"s47" if pr else "0"} offen offset:{jb*512}')
    E.i(stamp_code(3, stamps))
    if stamps:
        E.i('s_waitcnt vmcnt(0)')
        E.i(stamp_code(4, stamps))
        E.i(stamp_store(5, stamps, kidx))
        E.i('''v_writelane_b32 v16, s72, 8
        v_writelane_b32 v17, s74, 8
        v_writelane_b32 v16, s68, 9
        v_writelane_b32 v17, s58, 9
        v_writelane_b32 v16, s60, 10
        v_writelane_b32 v17, s78, 10
        s_add_u32 s80, s80, 0x100000
        s_addc_u32 s81, s81, 0
        s_mov_b32 s82, 0x100000
        s_lshl_b32 s56, s56, 3
        v_lshl_add_u32 v1, v0, 2, s56
        buffer_store_dword v16, v1, s[80:83], 0 offen
        buffer_store_dword v17, v1, s[80:83], 0 offen offset:256''')
    E.label(f'{name}_done')
    E.i('s_endpgm')
    lines = lines_of(P) + bl + lines_of(E)
    return kernel_text(name, lines, 256 + (96 if accv else 224), 256), (name, 256, 256, NS * SLOT), mo

if __name__ == '__main__':
    variants = {
        'k3b_base': dict(NS=4, stamps=True),
        'k3b_nomfma': dict(NS=4, stamps=True, do_mfma=False),
        'k3b_noload': dict(NS=4, stamps=True, do_dma=False, do_t=False),
    }
    for n, kw in variants.items():
        k, l, mo = gen_k3b(**kw)
        open(n + '.s', 'w').write(file_text([l], [k]))
        print(n, 'max outstanding vm', mo)
```

```python
from asmlib import *
from k3 import WS_XN, WS_O, WS_H, WS_HN, WS_HH, WS_STAMP, stamp_code, stamp_store

def gen_k4(name='k4_kernel', K=3584, w_arg=48, t_ws=WS_HH, mode='final', NS=4, DT=4, stamps=False,
           do_mfma=True, do_dma=True, do_t=True, do_rd=True, kidx=4, tmap=0, wflag='', tflag='', pf=False):
    SLOT = 16384
    NST = K // 128
    assert NST % DT == 0
    TROW = (K // 8) * 256
    ACC = lambda n: f'v[{32+4*n}:{35+4*n}]'
    WF = lambda n, lo=0, hi=3: f'v[{64+4*n+lo}:{64+4*n+hi}]'
    TF = lambda n: f'v[{96+4*n}:{99+4*n}]'
    NV = 96 + DT * 32
    P = Stream()
    P.i(f"""
    s_cmp_ge_u32 s2, 256
    s_cbranch_scc1 {name}_done
    s_load_dwordx2 s[4:5], s[0:1], {w_arg}
    s_load_dwordx2 s[6:7], s[0:1], {56 if mode == 'final' else 0}
    s_load_dwordx2 s[8:9], s[0:1], 72
    s_load_dwordx4 s[92:95], s[0:1], 32
    """)
    if stamps: P.i('s_memrealtime s[78:79]')
    P.i(stamp_code(0, stamps))
    P.i(f"""
    v_lshrrev_b32 v1, 6, v0
    v_and_b32 v0, 63, v0
    v_readfirstlane_b32 s10, v1
    s_and_b32 s11, s2, 7
    s_lshr_b32 s28, s2, 3
    s_and_b32 s29, s11, 3
    s_lshl_b32 s29, s29, 2
    {'s_and_b32 s30, s28, 3' if tmap == 0 else 's_lshr_b32 s30, s28, 3'}
    s_add_u32 s29, s29, s30          ; mt (0..15)
    s_lshr_b32 s30, s11, 2
    s_lshl_b32 s30, s30, 3
    {'s_lshr_b32 s31, s28, 2' if tmap == 0 else 's_and_b32 s31, s28, 7'}
    s_add_u32 s30, s30, s31          ; nt (0..15)
    v_lshlrev_b32 v10, 4, v0         ; lane*16
    v_lshrrev_b32 v11, 5, v0
    v_lshlrev_b32 v11, 3, v11
    v_bfe_u32 v12, v0, 3, 2
    v_add_u32 v11, v11, v12
    s_lshl_b32 s32, s10, 5
    v_add_u32 v11, s32, v11
    v_lshlrev_b32 v11, 11, v11
    v_bfe_u32 v12, v0, 4, 2
    v_lshlrev_b32 v12, 1, v12
    v_and_b32 v14, 7, v0
    v_xor_b32 v12, v12, v14
    v_lshl_add_u32 v2, v12, 4, v11
    v_add_u32 v3, {4*2048-1024}, v2
    v_add_u32 v4, {16*2048-2048}, v2
    v_add_u32 v5, {20*2048-3072}, v2
    s_lshl_b32 s38, s10, 12
    s_lshl_b32 s36, s29, 3
    s_lshl_b32 s37, s10, 1
    s_add_u32 s36, s36, s37
    s_mul_i32 s37, s36, {TROW}
    s_add_u32 s37, s37, 0x{t_ws:x}
    s_lshl_b32 s35, s30, 7
    s_waitcnt lgkmcnt(0)
    {stamp_code(5, stamps)}
    s_add_u32 s12, s4, s35
    s_addc_u32 s13, s5, 0
    s_sub_u32 s14, {K*2048}, s35
    s_mov_b32 s15, 0x20000
    s_add_u32 s16, s8, s37
    s_addc_u32 s17, s9, 0
    s_mov_b32 s18, {TROW}
    s_mov_b32 s19, 0x20000
    s_add_u32 s20, s16, {TROW}
    s_addc_u32 s21, s17, 0
    s_mov_b32 s22, {TROW}
    s_mov_b32 s23, 0x20000
    """)
    def dma(st, stage, i):
        st.vm(('W', stage, i), f'buffer_load_dwordx4 v{2+i}, s[12:15], s40 offen offset:{i*1024} {wflag} lds' if do_dma else 's_nop 0')
    def tload(st, stage, ks, tb, imm):
        b = 16 + 4 * tb
        st.vm(('T', stage, ks, tb), f'buffer_load_dwordx4 {TF((stage%DT)*8+ks*2+tb)}, v10, s[{b}:{b+3}], s42 offen offset:{imm} {tflag}' if do_t else 's_nop 0')
    def wread(st, stage, ks, j, q):
        st.lg(('R', stage, ks, j, q), f'ds_read_b64_tr_b16 {WF((ks*4+j)%8, 2*q, 2*q+1)}, v{16+j} offset:{(32*ks+8*q)*128}' if do_rd else 's_nop 0')
    PRO_SLOT = len(P.items)
    P.i(stamp_code(6, stamps))
    P.i(f"""
    v_lshrrev_b32 v11, 5, v0
    v_lshlrev_b32 v11, 4, v11
    v_bfe_u32 v12, v0, 2, 3
    v_add_u32 v11, v11, v12
    v_lshlrev_b32 v11, 7, v11
    v_and_b32 v12, 3, v0
    v_lshl_add_u32 v11, v12, 3, v11
    v_bfe_u32 v12, v0, 3, 2
    """)
    for j in range(4):
        P.i(f'v_xor_b32 v14, {j}, v12\nv_lshl_add_u32 v{20+j}, v14, 5, v11\nv_mov_b32 v{16+j}, v{20+j}')
    for r in range(32): P.i(f'v_mov_b32 v{32+r}, 0')
    P.i(stamp_code(7, stamps))
    P.i('PROWAIT\ns_barrier')
    P.i(stamp_code(1, stamps))
    LAG = 6
    for n in range(LAG):
        for q in range(2): wread(P, 0, n // 4, n % 4, q)

    def body(it):
        B = Stream()
        B.label(f'{name}_loop')
        for sl in range(DT):
            s = it * DT + sl
            for ks in range(4):
                fill = [[] for _ in range(8)]
                for j in range(4):
                    n = ks * 4 + j + LAG
                    rs, rks, rj = s + n // 16, (n % 16) // 4, n % 4
                    for q in range(2):
                        fill[2*j+q].append(lambda rs=rs, rks=rks, rj=rj, q=q: wread(B, rs, rks, rj, q))
                ts, tks = (s + DT - 1, 3) if ks == 0 else (s + DT, ks - 1)
                fill[1].append(lambda: tload(B, ts, tks, 0, ks * 1024))
                fill[3].append(lambda: tload(B, ts, tks, 1, ks * 1024))
                if ks >= 2: fill[6].append(lambda: dma(B, s + NS - 1, ks - 2))
                else: fill[6].append(lambda: dma(B, s + NS - 2, ks + 2))
                if ks == 1:
                    fill[7].append(lambda: B.i(f"""
                      s_add_u32 s43, s43, {SLOT}
                      s_and_b32 s43, s43, {NS*SLOT-1}""" if NS & (NS-1) == 0 else f"""
                      s_add_u32 s43, s43, {SLOT}
                      s_cmp_eq_u32 s43, {NS*SLOT}
                      s_cselect_b32 s43, 0, s43"""))
                if ks == 2:
                    fill[0].append(lambda: B.i(f"""
                      s_add_u32 s41, s41, {SLOT}
                      s_cmp_eq_u32 s41, {NS*SLOT}
                      s_cselect_b32 s41, 0, s41"""))
                    fill[2].append(lambda: B.i(f's_add_u32 s40, s40, {128*2048}\ns_add_u32 m0, s41, s38'))
                if ks == 3:
                    fill[7].append(lambda: B.i('s_add_u32 s42, s42, 4096'))
                B.wvm([('T', s, ks, tb) for tb in range(2)])
                for j in range(4):
                    if ks == 2 and j == 2:
                        B.wvm([('W', s + 1, i) for i in range(4)])
                        B.i('s_barrier')
                        for jj in range(4): B.i(f'v_add_u32 v{16+jj}, s43, v{20+jj}')
                    B.wlg(('R', s, ks, j, 1))
                    for tb in range(2):
                        a = ACC(j * 2 + tb)
                        B.i(f'v_mfma_f32_16x16x32_bf16 {a}, {WF((ks*4+j)%8)}, {TF((s%DT)*8+ks*2+tb)}, {a}' if do_mfma else 's_nop 0')
                        for f in fill[2*j+tb]: f()
        B.i(f's_add_u32 s44, s44, 1\ns_cmp_lt_u32 s44, {NST//DT}\ns_cbranch_scc1 {name}_loop')
        return B
    L = Stream()
    for it in range(-3, 0):
        for x in body(it).items:
            if x[0] == 'vm' and x[1][1] >= 0:
                tg = x[1]
                if tg[0] == 'W':
                    L.i(f's_add_u32 m0, s38, {tg[1]*SLOT}\ns_mov_b32 s40, {tg[1]*128*2048}')
                    dma(L, tg[1], tg[2])
                else:
                    L.i(f's_mov_b32 s42, {tg[1]*4096}')
                    tload(L, tg[1], tg[2], tg[3], tg[2] * 1024)
    L.i(f's_mov_b32 s42, {(DT-1)*4096+3072}\ns_mov_b32 s41, {(NS-2)*SLOT}\ns_mov_b32 s43, 0\ns_mov_b32 s44, 0')
    vms = [x[1] for x in L.items if x[0] == 'vm']
    nafter = len(vms) - 1 - vms.index(('W', 0, 3))
    P.items[PRO_SLOT:PRO_SLOT] = L.items
    P.items = [('i', f's_waitcnt vmcnt({nafter})') if x == ('i', 'PROWAIT') else x for x in P.items]
    bl = resolve_loop(body)
    mo = verify(P, body, bl, NST // DT)
    E = Stream()
    E.i(stamp_code(2, stamps))
    E.i(f"""
    v_bfe_u32 v13, v0, 4, 1
    v_add_u32 v13, s36, v13          ; tb16
    v_and_b32 v14, 15, v0            ; t
    v_lshrrev_b32 v15, 5, v0         ; g>>1
    v_lshl_add_u32 v11, v13, 4, v14  ; token
    v_lshlrev_b32 v11, 11, v11
    v_lshl_add_u32 v11, v15, 4, v11
    v_add_u32 v11, s35, v11          ; + nt*128
    v_lshlrev_b32 v12, 15, v13
    v_lshl_add_u32 v12, v15, 8, v12
    v_lshl_add_u32 v12, v14, 4, v12
    s_lshl_b32 s39, s30, 11
    v_add_u32 v12, s39, v12
    s_mov_b32 s24, s6
    s_mov_b32 s25, s7
    s_mov_b32 s26, {2048*2048}
    s_mov_b32 s27, 0x20000
    s_add_u32 s84, s8, 0x{WS_H:x}
    s_addc_u32 s85, s9, 0
    s_mov_b32 s86, {2048*2048}
    s_mov_b32 s87, 0x20000
    s_waitcnt vmcnt(0) lgkmcnt(0)
    """)
    rm = lambda op, regs, j: f'{op} {regs}, v11, s[24:27], 0 offen offset:{32*j}'
    um = lambda op, regs, j: f'{op} {regs}, v12, s[84:87], 0 offen offset:{512*j}'
    ld, stt = (um, rm) if mode == 'final' else (rm, um)
    for j in range(4): E.i(ld('buffer_load_dwordx4', f'v[{96+4*j}:{99+4*j}]', j))
    if pf:
        E.i('''
        s_cmp_ge_u32 s10, 2
        s_cselect_b32 s92, s94, s92
        s_cselect_b32 s93, s95, s93
        s_and_b32 s57, s10, 1
        s_lshl_b32 s57, s57, 8
        s_add_u32 s57, s57, s2
        s_mul_i32 s57, s57, 48
        s_add_u32 s57, s57, 32768
        v_min_u32 v9, 47, v0''')
        E.i(touch(0, 1024*7168, 's57', 92, 9, 9, lane='v9'))
    for j in range(4):
        a = 32 + 8 * j
        for r in range(4): E.i(f'v_permlane16_swap_b32 v{a+r}, v{a+4+r}')
    for j in range(4):
        a = 32 + 8 * j
        E.i(f's_waitcnt vmcnt({3 + (1 if pf else 0)})')
        for r in range(4):
            E.i(f'v_lshlrev_b32 v13, 16, v{96+4*j+r}\nv_and_b32 v14, 0xffff0000, v{96+4*j+r}')
            E.i(f'v_add_f32 v{a+2*r}, v{a+2*r}, v13\nv_add_f32 v{a+2*r+1}, v{a+2*r+1}, v14')
        for r in range(4): E.i(f'v_cvt_pk_bf16_f32 v{64+4*j+r}, v{a+2*r}, v{a+2*r+1}')
        E.i(stt('buffer_store_dwordx4', f'v[{64+4*j}:{67+4*j}]', j))
    E.i(stamp_code(3, stamps))
    if stamps:
        E.i('s_waitcnt vmcnt(0)')
        E.i(stamp_code(4, stamps))
        E.i(stamp_store(5, stamps, kidx, extra=(5, 6, 7)))
    E.label(f'{name}_done')
    E.i('s_endpgm')
    lines = lines_of(P) + bl + lines_of(E)
    return kernel_text(name, lines, NV, (NV + 3) // 4 * 4), (name, 256, 256, NS * SLOT), mo

if __name__ == '__main__':
    variants = {
        'k4_base': dict(NS=4, DT=4, stamps=True),
        'k4_ns6': dict(NS=6, DT=4, stamps=True),
        'k4_dt2': dict(NS=4, DT=2, stamps=True),
        'k4_dt2m': dict(NS=4, DT=2, stamps=True, tmap=1),
        'k4_nomfma': dict(NS=6, DT=4, stamps=True, do_mfma=False),
        'k4_nodma': dict(NS=6, DT=4, stamps=True, do_mfma=False, do_dma=False),
        'k4_not': dict(NS=6, DT=4, stamps=True, do_mfma=False, do_t=False),
        'k4_not_nt': dict(NS=6, DT=4, stamps=True, do_mfma=False, do_t=False, wflag='nt'),
        'k4_not_sc1': dict(NS=6, DT=4, stamps=True, do_mfma=False, do_t=False, wflag='sc1'),
        'k4_not_sc01': dict(NS=6, DT=4, stamps=True, do_mfma=False, do_t=False, wflag='sc0 sc1'),
        'k4_wsc1': dict(NS=4, DT=2, stamps=True, wflag='sc1'),
        'k4_wtsc1': dict(NS=4, DT=2, stamps=True, wflag='sc1', tflag='sc1'),
        'k4_wnt': dict(NS=4, DT=2, stamps=True, wflag='nt'),
        'k4_noload': dict(NS=4, stamps=True, do_dma=False, do_t=False),
    }
    for n, kw in variants.items():
        k, l, mo = gen_k4(**kw)
        open(n + '.s', 'w').write(file_text([l], [k]))
        print(n, 'max outstanding vm', mo)
```

```python
from asmlib import *
from k3 import WS_XN, WS_O, WS_H, WS_HN, WS_HH, WS_STAMP

def xsum(v, tmp):
    return f"""
    s_nop 1
    v_add_f32_dpp v{v}, v{v}, v{v} row_ror:8 row_mask:0xf bank_mask:0xf
    v_mov_b32 v{tmp}, v{v}
    s_nop 1
    v_permlane16_swap_b32 v{v}, v{tmp}
    v_add_f32 v{v}, v{v}, v{tmp}
    v_mov_b32 v{tmp}, v{v}
    s_nop 1
    v_permlane32_swap_b32 v{v}, v{tmp}
    v_add_f32 v{v}, v{v}, v{tmp}
    """

def gen_ln(name, src, dst_ws, pf=False):
    P = Stream()
    P.i(f"""
    s_cmp_ge_u32 s2, 256
    s_cbranch_scc1 {name}_done
    s_load_dwordx2 s[4:5], s[0:1], 0
    s_load_dwordx2 s[8:9], s[0:1], 72
    s_load_dwordx4 s[28:31], s[0:1], 8
    v_and_b32 v1, 7, v0              ; t
    v_lshrrev_b32 v2, 6, v0          ; wave
    v_bfe_u32 v3, v0, 3, 3           ; g
    v_lshl_add_u32 v3, v2, 5, v3     ; kc0 = 32w + g
    s_lshl_b32 s10, s2, 3
    v_add_u32 v4, s10, v1            ; token
    v_lshlrev_b32 v5, 11, v4
    v_lshl_add_u32 v5, v3, 4, v5
    v_lshrrev_b32 v6, 4, v4
    v_lshlrev_b32 v6, 15, v6
    v_lshl_add_u32 v6, v3, 8, v6
    v_and_b32 v7, 15, v4
    v_lshl_add_u32 v6, v7, 4, v6
    v_add_u32 v8, 4096, v6
    v_lshlrev_b32 v9, 2, v1
    v_lshl_add_u32 v10, v2, 5, v9
    s_waitcnt lgkmcnt(0)
    """)
    if src == 'x':
        P.i('s_mov_b32 s12, s4\ns_mov_b32 s13, s5')
    else:
        P.i(f's_add_u32 s12, s8, 0x{src:x}\ns_addc_u32 s13, s9, 0')
    P.i(f"""
    s_mov_b32 s14, 0x400000
    s_mov_b32 s15, 0x20000
    s_add_u32 s16, s8, 0x{dst_ws:x}
    s_addc_u32 s17, s9, 0
    s_mov_b32 s18, 0x400000
    s_mov_b32 s19, 0x20000
    """)
    for i in range(4):
        if src == 'x':
            P.i(f'buffer_load_dwordx4 v[{16+4*i}:{19+4*i}], v5, s[12:15], 0 offen offset:{128*i}')
        else:
            P.i(f'buffer_load_dwordx4 v[{16+4*i}:{19+4*i}], v{6 if i < 2 else 8}, s[12:15], 0 offen offset:{2048*(i%2)}')
    if pf:
        P.i('''
        v_readfirstlane_b32 s20, v2
        v_and_b32 v15, 63, v0
        s_mul_i32 s21, s2, 192
        s_lshl_b32 s22, s20, 6
        s_add_u32 s21, s21, s22
        s_lshl_b32 s22, s2, 6
        s_cmp_eq_u32 s20, 3
        s_cselect_b32 s21, s22, s21
        s_cselect_b32 s24, s30, s28
        s_cselect_b32 s25, s31, s29
        s_mov_b32 s26, 0x600000
        s_cselect_b32 s26, 0x200000, s26
        s_mov_b32 s27, 0x20000
        v_add_u32 v15, s21, v15
        v_lshlrev_b32 v15, 7, v15
        buffer_load_dword v15, v15, s[24:27], 0 offen
        s_waitcnt vmcnt(1)''')
    else:
        P.i('s_waitcnt vmcnt(0)')
    for r in range(16):
        P.i(f'v_lshlrev_b32 v{32+2*r}, 16, v{16+r}\nv_and_b32 v{33+2*r}, 0xffff0000, v{16+r}')
    P.i('v_add_f32 v11, v32, v33')
    for r in range(2, 32): P.i(f'v_add_f32 v11, v11, v{32+r}')
    P.i(xsum(11, 12))
    P.i("""
    ds_write_b32 v10, v11
    s_waitcnt lgkmcnt(0)
    s_barrier
    ds_read_b32 v11, v9
    ds_read_b32 v12, v9 offset:32
    ds_read_b32 v13, v9 offset:64
    ds_read_b32 v14, v9 offset:96
    s_waitcnt lgkmcnt(0)
    v_add_f32 v11, v11, v12
    v_add_f32 v13, v13, v14
    v_add_f32 v11, v11, v13
    v_mul_f32 v11, 0x3a800000, v11    ; mean
    """)
    for r in range(32): P.i(f'v_sub_f32 v{32+r}, v{32+r}, v11')
    P.i('v_mul_f32 v11, v32, v32')
    for r in range(1, 32): P.i(f'v_fmac_f32 v11, v{32+r}, v{32+r}')
    P.i(xsum(11, 12))
    P.i("""
    ds_write_b32 v10, v11 offset:128
    s_waitcnt lgkmcnt(0)
    s_barrier
    ds_read_b32 v11, v9 offset:128
    ds_read_b32 v12, v9 offset:160
    ds_read_b32 v13, v9 offset:192
    ds_read_b32 v14, v9 offset:224
    s_waitcnt lgkmcnt(0)
    v_add_f32 v11, v11, v12
    v_add_f32 v13, v13, v14
    v_add_f32 v11, v11, v13
    v_mov_b32 v12, 0x3727c5ac
    v_fmac_f32 v12, 0x3a800000, v11
    v_rsq_f32 v12, v12
    s_nop 0
    """)
    for r in range(32): P.i(f'v_mul_f32 v{32+r}, v{32+r}, v12')
    for r in range(16): P.i(f'v_cvt_pk_bf16_f32 v{16+r}, v{32+2*r}, v{33+2*r}')
    for i in range(4):
        P.i(f'buffer_store_dwordx4 v[{16+4*i}:{19+4*i}], v{6 if i < 2 else 8}, s[16:19], 0 offen offset:{2048*(i%2)}')
    P.label(f'{name}_done')
    P.i('s_endpgm')
    return kernel_text(name, lines_of(P), 64, 64, 40), (name, 256, 256, 256)
```

```python
import sys
from asmlib import *
from k3 import WS_XN, WS_O, WS_H, WS_HN, WS_HH
from ln import gen_ln
from k1 import gen_k1
from k3b import gen_k3b
from k4 import gen_k4
def build(stamps):
    ks = [gen_ln('ln1_kernel', 'x', WS_XN, pf=True),
          gen_k1(stamps=stamps, pf=True)[:2],
          gen_k4('k2_kernel', K=1024, w_arg=16, t_ws=WS_O, mode='h', NS=4, DT=2, stamps=stamps, kidx=2, pf=True)[:2],
          gen_ln('ln2_kernel', WS_H, WS_HN),
          gen_k3b(stamps=stamps, pf=True)[:2],
          gen_k4(NS=4, DT=2, stamps=stamps)[:2]]
    return file_text([k[1] for k in ks], [k[0] for k in ks])
open('all_st.s', 'w').write(build(True))
open('all.s', 'w').write(build(False))
```
